```python
import torch

def _softmax(x, axis=-1):
    return torch.softmax(x, dim=axis)
def _gelu(x):
    return torch.nn.functional.gelu(x, approximate="tanh")
def _silu(x):
    return torch.nn.functional.silu(x)
def _sigmoid(x):
    return torch.sigmoid(x)
def _layernorm(x, axis=-1, eps=1e-5):
    m = x.mean(dim=axis, keepdim=True)
    v = x.var(dim=axis, keepdim=True, unbiased=False)
    return (x - m) / torch.sqrt(v + eps)
def _scatter_add(tgt, idx, src, axis=0):
    return tgt.clone().index_add_(axis, idx, src)
def _segment_sum(src, seg, n):
    out = torch.zeros((n,) + src.shape[1:], dtype=src.dtype)
    return out.index_add_(0, seg, src)
def _pad(x, pw):
    flat = tuple(v for pair in reversed(pw) for v in pair)
    return torch.nn.functional.pad(x, flat)

kernel_name = 'gated_mix__sliding_block__ssm_conv_h3__prompt'

def setup_inputs():

    _w = (lambda a: (lambda t: t.to(torch.bfloat16) if t.is_floating_point() else t)(torch.as_tensor(a)))
    def _A_setup():
        B, S, D = 1, 2048, 512
        return {
            "x": _w((lambda *s: torch.randn(*s, dtype=torch.bfloat16) * 0.05)(B, S, D)),
            "wqkv": _w((lambda *s: torch.randn(*s, dtype=torch.bfloat16) * 0.8)(D, 3 * D)),
            "wo": _w((lambda *s: torch.randn(*s, dtype=torch.bfloat16) * 0.05)(D, D)),
        }
    _A_in = _A_setup()

    def _B_setup():
        B, S, D = 1, 2048, 512
        ks = 4
        return {
            "q": _w((lambda *s: torch.randn(*s, dtype=torch.bfloat16) * 0.05)(B, S, D)),
            "k": _w((lambda *s: torch.randn(*s, dtype=torch.bfloat16) * 0.8)(B, S, D)),
            "v": _w((lambda *s: torch.randn(*s, dtype=torch.bfloat16) * 0.8)(B, S, D)),
            "shift_k": _w((lambda *s: torch.randn(*s, dtype=torch.bfloat16) * 0.8)(D, ks) * 0.5),
            "ssm_k": _w((lambda *s: torch.randn(*s, dtype=torch.bfloat16) * 1.6)(D, S) * (1.0 / S ** 0.5)),
            "ssm_D": _w((lambda *s: torch.randn(*s, dtype=torch.bfloat16) * 0.8)(D)),
        }
    _B_in = _B_setup()

    return {
        "A_x": _A_in["x"],
        "A_wqkv": _A_in["wqkv"],
        "A_wo": _A_in["wo"],
        "B_q": _B_in["q"],
        "B_k": _B_in["k"],
        "B_v": _B_in["v"],
        "B_shift_k": _B_in["shift_k"],
        "B_ssm_k": _B_in["ssm_k"],
        "B_ssm_D": _B_in["ssm_D"],
        "gate_w": _w((lambda *s: torch.randn(*s, dtype=torch.bfloat16) * 0.05)(512) * 16.0),
    }

def reference(A_x, A_wqkv, A_wo, B_q, B_k, B_v, B_shift_k, B_ssm_k, B_ssm_D, gate_w):
    def _A_ref(x, wqkv, wo):
        B, S, D = x.shape
        H = 32; Dh = D // H; W = 256
        qkv = (lambda x, *d: x.permute(*d))((x @ wqkv).reshape(B, S, 3, H, Dh), 2, 0, 3, 1, 4)
        q, k, v = qkv[0], qkv[1], qkv[2]
        scores = torch.einsum("bhqd,bhkd->bhqk", q, k) * (Dh ** -0.5)
        idx = torch.arange(S)
        mask = (idx[:, None] - idx[None, :] >= 0) & (idx[:, None] - idx[None, :] < W)
        scores = torch.where(mask[None, None], scores, -1e9)
        p = _softmax(scores, axis=-1)
        o = torch.einsum("bhqk,bhkd->bhqd", p, v)
        return (lambda x, *d: x.permute(*d))(o, 0, 2, 1, 3).reshape(B, S, D) @ wo

    def _B_ref(q, k, v, shift_k, ssm_k, ssm_D):
        B, S, D = q.shape
        ks = shift_k.shape[-1]
        k_pad = _pad(k, ((0, 0), (ks - 1, 0), (0, 0)))
        k_shift = torch.zeros_like(k)
        for t in range(ks):
            k_shift = k_shift + k_pad[:, t:t + S, :] * shift_k[:, ks - 1 - t][None, None, :]
        kv = k_shift * v
        L = 2 * S
        kv_pad = _pad(kv, ((0, 0), (0, S), (0, 0)))
        kf_pad = _pad(ssm_k, ((0, 0), (0, S)))
        kv_f = (lambda x, axes=(-2,-1): torch.fft.rfft2(x.float(), dim=axes))(kv_pad[:, None, :, :], axes=(1, 2))
        kf_f = (lambda x, axes=(-2,-1): torch.fft.rfft2(x.float(), dim=axes))(kf_pad[:, None, :], axes=(1, 2))
        kf_f = (lambda x, *d: x.permute(*d))(kf_f, 1, 2, 0)
        y_f = kv_f * kf_f[None, :, :, :]
        y = (lambda x, s, axes=(-2,-1): torch.fft.irfft2(x, s=s, dim=axes).to(torch.bfloat16))(y_f, (1, L), axes=(1, 2))[:, 0, :S, :]
        y = y + kv * ssm_D[None, None, :]
        return q * y

    x = A_x
    g = _sigmoid((x * gate_w).sum(-1, keepdims=True))
    a = _A_ref(x, A_wqkv, A_wo)
    b = _B_ref(x, B_k, B_v, B_shift_k, B_ssm_k, B_ssm_D)
    return g * a + (1 - g) * b
```

```python
import re

REG_RE = re.compile(r'\b([vsa])\[(\d+):(\d+)\]|\b([vsa])(\d+)\b|\b(vcc|exec|m0|scc)\b')
TRANS = ('v_exp_', 'v_log_', 'v_rcp_', 'v_rsq_', 'v_sqrt_', 'v_sin_', 'v_cos_')

def regs_of(tok):
    out = []
    for m in REG_RE.finditer(tok):
        if m.group(1):
            out += [f"{m.group(1)}{i}" for i in range(int(m.group(2)), int(m.group(3)) + 1)]
        elif m.group(4):
            out.append(f"{m.group(4)}{m.group(5)}")
        else:
            out.append(m.group(6))
    return out

class Ins:
    def __init__(self, text):
        self.text = text
        t = text.split(';')[0].strip()
        self.label = t[:-1] if t.endswith(':') else None
        self.op = '' if self.label or t.startswith('.') or not t else t.split()[0]
        rest = t[len(self.op):].strip() if self.op else ''
        self.ops = [x.strip() for x in self._split(rest)] if rest else []
        self.w = set(); self.r = set()
        self.srcA = self.srcB = self.srcC = set()
        self.classify()
    @staticmethod
    def _split(s):
        parts, depth, cur = [], 0, ''
        for ch in s:
            if ch in '[(': depth += 1
            if ch in '])': depth -= 1
            if ch == ',' and depth == 0:
                parts.append(cur); cur = ''
            else:
                cur += ch
        parts.append(cur)
        return parts
    def classify(self):
        op, o = self.op, self.ops
        self.is_mfma = op.startswith('v_mfma')
        self.is_valu = op.startswith('v_') and not self.is_mfma
        self.is_salu = op.startswith('s_')
        self.is_ds = op.startswith('ds_')
        self.is_vmem = op.startswith(('buffer_', 'global_', 'flat_'))
        self.is_trans = op.startswith(TRANS)
        self.is_dpp = 'dpp' in op or any(k in self.text for k in ('row_shr', 'row_shl', 'row_ror', 'quad_perm', 'row_mirror', 'row_half_mirror', 'row_bcast', 'wave_'))
        self.is_lds_dma = self.is_vmem and (re.search(r'\blds\b', self.text.split(';')[0]) is not None or 'load_lds' in op)
        self.passes = 0
        R = lambda i: set(regs_of(o[i])) if i < len(o) else set()
        allr = lambda a: set().union(*[set(regs_of(x)) for x in o[a:]]) if len(o) > a else set()
        if self.is_mfma:
            self.w = R(0); self.srcA = R(1); self.srcB = R(2); self.srcC = R(3)
            self.r = self.srcA | self.srcB | self.srcC
            self.passes = 8 if '32x32' in op else 4
        elif self.is_valu:
            if op.startswith('v_permlane') and 'swap' in op:
                self.w = R(0) | R(1); self.r = R(0) | R(1)
            elif op.startswith('v_cmpx'):
                self.w = R(0) | {'exec'}; self.r = allr(1)
            elif '_co_' in op or op.startswith('v_div_scale'):
                self.w = R(0) | R(1); self.r = allr(2)
            else:
                self.w = R(0); self.r = allr(1)
                if op.startswith(('v_fmac', 'v_dot2c', 'v_writelane')) or self.is_dpp:
                    self.r |= R(0)
            if op in ('v_nop',):
                self.w = set(); self.r = set()
        elif self.is_ds:
            if op.startswith(('ds_read', 'ds_bpermute', 'ds_permute', 'ds_swizzle')) or '_rtn' in op:
                self.w = R(0); self.r = allr(1)
            else:
                self.r = allr(0)
        elif self.is_vmem:
            if 'load' in op and not self.is_lds_dma:
                self.w = R(0); self.r = allr(1)
            else:
                self.r = allr(0)
            if self.is_lds_dma: self.r |= {'m0'}
        elif self.is_salu:
            if op.startswith(('s_cmp', 's_cbranch', 's_branch', 's_waitcnt', 's_barrier', 's_nop', 's_endpgm', 's_sleep', 's_setprio', 's_bitcmp')):
                self.r = allr(0)
            else:
                self.w = R(0); self.r = allr(1)
                if 'saveexec' in op: self.w |= {'exec'}
        self.wide_store = self.is_vmem and 'store' in op and ('x3' in op or 'x4' in op)
        if self.wide_store:
            self.sdata = R(0) if op.startswith('buffer') else R(1)
    @property
    def states(self):
        if self.op == 's_nop': return int(self.ops[0], 0) + 1
        return 1 if self.op else 0

def need(p, c):
    n = 0
    vw = {x for x in p.w if x[0] in 'va' and x != 'vcc'}
    sw = {x for x in p.w if x[0] == 's' or x == 'vcc'}
    if p.is_valu:
        if c.is_mfma and vw & c.r: n = max(n, 2)
        if c.is_vmem and sw & c.r: n = max(n, 5)
        if c.is_valu and sw & c.r:
            n = max(n, 4 if c.op.startswith(('v_readlane', 'v_writelane', 'v_div_fmas')) else 2)
        if c.is_valu and 'vcc' in sw and c.op.startswith(('v_div_fmas',)): n = max(n, 4)
        if c.op.startswith(('v_readlane', 'v_readfirstlane')) and vw & c.r: n = max(n, 1)
        if c.is_valu and c.is_dpp and vw & c.r: n = max(n, 2)
        if c.op.startswith('v_permlane') and vw & c.r: n = max(n, 2)
        if p.is_trans and c.is_valu and not c.is_trans and vw & c.r: n = max(n, 1)
        if p.is_trans and (c.is_mfma) and vw & c.r: n = max(n, 2)
        if ('sdwa' in p.op or 'op_sel' in p.text) and c.is_valu and vw & (c.r | c.w): n = max(n, 1)
        if 'exec' in p.w:
            if c.is_mfma: n = max(n, 4)
            if c.is_dpp: n = max(n, 5)
            if c.op.startswith(('v_readlane', 'v_readfirstlane', 'v_writelane', 'v_permlane')): n = max(n, 4)
        if p.op.startswith('v_dot') and (c.is_valu or c.is_vmem or c.is_ds) and vw & (c.r | c.w):
            if c.op == p.op and len(c.ops) >= 3:
                ab = set(regs_of(c.ops[1])) | set(regs_of(c.ops[2]))
                if vw & ab: n = max(n, 3)
            else:
                n = max(n, 3)
        if c.is_salu and (sw & c.r or ('vcc' in sw and c.op.startswith('s_cbranch_vcc'))): n = max(n, 1)
    if p.is_salu and 'm0' in p.w and c.is_lds_dma: n = max(n, 1)
    if p.is_mfma:
        big = {4: 8, 8: 12}[p.passes]
        if c.is_mfma:
            if p.w & (c.srcA | c.srcB): n = max(n, big)
            if p.w & c.srcC:
                if not (p.w == c.srcC and p.passes == c.passes): n = max(n, big - 2)
            elif p.w & c.w:
                n = max(n, big - 2)
        elif (c.is_valu or c.is_vmem or c.is_ds) and p.w & (c.r | c.w): n = max(n, big)
        if c.is_valu and p.srcC & c.w: n = max(n, {4: 3, 8: 7}[p.passes])
    if getattr(p, 'wide_store', False) and (c.is_valu or c.is_mfma or c.is_ds or c.is_vmem) and p.sdata & c.w: n = max(n, 2)
    return n

class Asm:
    def __init__(self):
        self.lines = []
        self.nlab = 0
    def __call__(self, text):
        for l in text.split('\n'):
            l = l.strip()
            if l: self.lines.append(l)
    def lab(self, base='L'):
        self.nlab += 1
        return f"{base}_{self.nlab}"
    def fix(self, verbose=False):
        ins = [Ins(l) for l in self.lines]
        MAXD = 13
        changed = True
        total = 0
        while changed:
            changed = False
            labels = {x.label: i for i, x in enumerate(ins) if x.label}
            jumps = {}
            for i, x in enumerate(ins):
                if x.op.startswith(('s_cbranch', 's_branch')):
                    jumps.setdefault(labels[x.ops[0]], []).append(i)
            def back(i, dist, seen):
                j = i - 1
                while j >= 0 and dist < MAXD:
                    x = ins[j]
                    if x.label:
                        for src in jumps.get(j, []):
                            if (src, dist) not in seen:
                                seen.add((src, dist))
                                yield from back(src + 1, dist, seen)
                    if x.op in ('s_branch', 's_endpgm') and j != i - 1:
                        return
                    if x.op in ('s_branch', 's_endpgm') and j == i - 1 and not seen:
                        return
                    if x.op:
                        yield x, dist
                        dist += x.states
                    j -= 1
            for i, c in enumerate(ins):
                if not c.op: continue
                worst = 0
                for p, d in back(i, 0, set()):
                    n = need(p, c)
                    if n > d and n - d > worst:
                        worst = n - d; wp = p
                if worst:
                    if verbose: print(f"hazard: +{worst} before '{c.text}' after '{wp.text}'")
                    ins.insert(i, Ins(f"s_nop {worst-1}"))
                    total += 1
                    changed = True
                    break
        self.lines = [x.text for x in ins]
        return total
    def text(self):
        return "\n".join(("" if l.endswith(':') else "    ") + l for l in self.lines) + "\n"
```

```python
import sys, math
sys.path.insert(0, "gen")
from asmx import Asm

NAME = "gated_mix__sliding_block__ssm_conv_h3__prompt"
OPT = dict(stamps=0, rot=0, force_slow=0, spin=1 << 20)
for a in sys.argv[2:]:
    k, v = a.split("="); OPT[k] = int(v, 0)

WS_KV, WS_O, WS_UR, WS_Y, WS_F, WS_ST, WS_SIZE = 0, 0x400000, 0x600000, 0x800000, 0xA00000, 0xB00000, 0xC00000
F3, F1, F4, F2 = WS_F, WS_F + 0x2000, WS_F + 0x4000, WS_F + 0x6000
SLOT = lambda c: ((c + 3) % 4) * 32768
L_H = 98304; HSTR = 4160
L_UR = 131584; URSTR = 4608
L_MISC = 140800
L_KT = 146432
L_VT = L_KT + 9216
L_SCR = L_KT
L_Q = 0; L_KV = 8192
L_G = 90112
L_WO = 98304; L_O = 0; L_Y = 65536
LOG2E = math.log2(math.e)
def f32(x):
    import struct
    return "0x%08x" % struct.unpack("<I", struct.pack("<f", x))[0]

SX, SW, SWO, SK, SV, SH, SWS, SOUT = 4, 8, 12, 16, 20, 24, 28, 32
srd = lambda b: f"s[{b}:{b+3}]"
sWAVE, sRB, sHG, sCG, sTB = "s36", "s37", "s38", "s39", "s40"
sNON = "s[42:43]"
P_X, P_W, P_WO, P_K, P_V, P_SK, P_H, P_D, P_GW, P_OUT, P_DBG, P_WS = 64, 66, 68, 72, 74, 76, 78, 80, 82, 84, 86, 88
pp = lambda p: f"s[{p}:{p+1}]"

A = Asm()
nst = [0]
def stamp(name):
    if not OPT["stamps"]: return
    A(f"s_memtime s[98:99]\ns_waitcnt lgkmcnt(0)\nv_writelane_b32 v2, s98, {STN[name]}")
STN = {}
for i, n in enumerate("start ptrs kvland presync predone b0 b1 b2 b3 b4 b5 b6 b7 gemmend ba convend bb bc attend bd be bf mmend end f1seen halo".split()):
    STN[n] = i

def mksrd(b, p, size):
    A(f"s_mov_b32 s{b}, s{p}\ns_and_b32 s{b+1}, s{p+1}, 0xffff\ns_mov_b32 s{b+2}, {size}\ns_mov_b32 s{b+3}, 0x20000")

def vr(b, n): return f"v[{b}:{b+n-1}]"

def get_nonce(vt):
    l = A.lab("NON"); d = A.lab("NOND")
    A(f"""
    v_mov_b32 v{vt+2}, 0
    s_mov_b32 s44, {OPT['spin']}
    {l}:
    global_load_dwordx2 {vr(vt,2)}, v{vt+2}, {pp(P_DBG)} sc1
    s_waitcnt vmcnt(0)
    v_readfirstlane_b32 s42, v{vt}
    v_readfirstlane_b32 s43, v{vt+1}
    s_sub_u32 s44, s44, 1
    s_cbranch_scc1 {d}
    s_cmp_eq_u32 s42, 0
    s_cbranch_scc1 {l}
    {d}:
    """)

def poll(nl, soff, vt, vaddr):
    l = A.lab("POLL"); d = A.lab("POLLD")
    mask = (1 << nl) - 1
    if nl <= 32:
        A(f"s_mov_b32 exec_lo, {hex(mask)}\ns_mov_b32 exec_hi, 0")
    A(f"""
    s_mov_b32 s44, {OPT['spin']}
    {l}:
    buffer_load_dwordx2 {vr(vt,2)}, v{vaddr}, {srd(SWS)}, {soff} offen sc1
    s_waitcnt vmcnt(0)
    v_cmp_ne_u64 vcc, {sNON}, {vr(vt,2)}
    s_sub_u32 s44, s44, 1
    s_cbranch_scc1 {d}
    s_cbranch_vccnz {l}
    {d}:
    s_mov_b64 exec, -1
    """)

def flag_store(soff, vt):
    A(f"""
    v_mov_b32 v{vt}, s42
    v_mov_b32 v{vt+1}, s43
    v_mov_b32 v{vt+2}, 0
    s_mov_b64 exec, 1
    buffer_store_dwordx2 {vr(vt,2)}, v{vt+2}, {srd(SWS)}, {soff} offen sc1
    s_mov_b64 exec, -1
    """)

A(f"""
s_cmp_ge_u32 s2, 256
s_cbranch_scc1 L_END
s_load_dwordx16 s[64:79], s[0:1], 0
s_load_dwordx8 s[80:87], s[0:1], 64
s_load_dwordx2 s[88:89], s[0:1], 96
s_memrealtime s[46:47]
v_lshrrev_b32 v3, 6, v0
v_and_b32 v1, 63, v0
v_readfirstlane_b32 {sWAVE}, v3
v_mov_b32 v2, 0
s_and_b32 {sCG}, s2, 7
s_lshr_b32 {sTB}, s2, 3
s_lshl_b32 {sRB}, {sCG}, 2
s_lshr_b32 s44, s2, 6
s_add_u32 {sRB}, {sRB}, s44
s_and_b32 {sHG}, {sTB}, 7
v_mov_b32 v4, {L_MISC}
v_mov_b32 v5, 0
ds_write_b32 v4, v5
""")
stamp("start")
A("s_waitcnt lgkmcnt(0)\ns_barrier")
stamp("ptrs")
mksrd(SWS, P_WS, WS_SIZE)
A(f"""
s_cmp_ge_u32 {sWAVE}, 4
s_cbranch_scc1 L_LOADER
""")

mksrd(SK, P_K, 0x200000); mksrd(SV, P_V, 0x200000)
A(f"""
s_or_b32 s44, s2, {sWAVE}
s_cmp_lg_u32 s44, 0
s_cbranch_scc1 L_NONONCE
s_or_b32 s46, s46, 1
v_mov_b32 v8, s46
v_mov_b32 v9, s47
v_mov_b32 v10, 0
s_mov_b64 exec, 1
global_store_dwordx2 v10, v[8:9], {pp(P_DBG)} sc1
s_mov_b64 exec, -1
L_NONONCE:
v_lshrrev_b32 v8, 3, v1
v_and_b32 v9, 7, v1
v_lshlrev_b32 v8, 10, v8
v_lshl_add_u32 v8, v9, 4, v8
s_lshl_b32 s44, {sTB}, 16
s_lshl_b32 s45, {sCG}, 7
s_add_u32 s44, s44, s45
v_add_u32 v8, s44, v8
s_lshl_b32 s45, {sWAVE}, 14
s_lshl_b32 s48, {sWAVE}, 11
s_add_u32 m0, s48, {L_KT + 1024}
s_add_u32 s49, s45, 8192
buffer_load_dwordx4 v8, {srd(SK)}, s45 offen lds
s_add_u32 m0, s48, {L_KT + 2048}
s_nop 0
buffer_load_dwordx4 v8, {srd(SK)}, s49 offen lds
s_add_u32 m0, s48, {L_VT}
s_nop 0
buffer_load_dwordx4 v8, {srd(SV)}, s45 offen lds
s_add_u32 m0, s48, {L_VT + 1024}
s_nop 0
buffer_load_dwordx4 v8, {srd(SV)}, s49 offen lds
s_cmp_lg_u32 {sWAVE}, 0
s_cbranch_scc1 L_NOHALO
v_subrev_u32 v9, 8192, v8
s_mov_b32 m0, {L_KT}
s_nop 0
buffer_load_dwordx4 v9, {srd(SK)}, 0 offen lds
L_NOHALO:
v_and_b32 v10, 15, v1
s_lshl_b32 s44, {sCG}, 6
s_lshl_b32 s45, {sWAVE}, 4
s_add_u32 s50, s44, s45
v_add_u32 v11, s50, v10              ; channel
v_lshlrev_b32 v12, 3, v11
global_load_dwordx2 v[14:15], v12, {pp(P_SK)}
s_lshl_b32 s45, {sTB}, 1
s_add_u32 s51, s44, s45
s_lshr_b32 s45, {sWAVE}, 1
s_add_u32 s51, s51, s45
s_lshl_b32 s45, s51, 12
v_and_b32 v16, 7, v1
v_lshl_add_u32 v16, v16, 2, s45
global_load_dword v17, v16, {pp(P_H)}
s_lshl_b32 s45, s51, 1
v_mov_b32 v16, s45
global_load_ushort v18, v16, {pp(P_D)}
s_lshl_b32 s45, s51, 12
v_and_b32 v16, 31, v1
v_lshl_add_u32 v16, v16, 7, s45
global_load_dword v19, v16, {pp(P_H)}
s_lshl_b32 s45, {sWAVE}, 7
s_add_u32 s52, s45, {L_MISC + 128}
v_and_b32 v16, 31, v1
v_lshl_add_u32 v20, v16, 2, s52
v_mov_b32 v21, 0
ds_write_b32 v20, v21
s_lshr_b32 s45, {sWAVE}, 1
s_mul_i32 s45, s45, {URSTR}
s_and_b32 s48, {sWAVE}, 1
s_lshl_b32 s48, s48, 8
s_add_u32 s45, s45, s48
s_add_u32 s45, s45, {L_UR + 4096}
v_lshl_add_u32 v22, v1, 2, s45
ds_write_b32 v22, v21
s_waitcnt vmcnt(0)
""")
stamp("kvland")
A(f"""
v_and_b32 v16, 7, v1
v_lshl_add_u32 v20, v16, 2, s52
ds_write_b32 v20, v17 offset:32
v_mov_b32 v20, s52
ds_write_b16 v20, v18 offset:96
v_mov_b32 v4, {L_MISC}
v_mov_b32 v5, 1
s_mov_b64 exec, 1
ds_add_u32 v4, v5
s_mov_b64 exec, -1
v_lshrrev_b32 v16, 4, v1
v_and_b32 v20, 1, v16
v_lshlrev_b32 v20, 3, v20
v_add3_u32 v20, v20, v10, 1
v_lshlrev_b32 v20, 1, v20
v_lshrrev_b32 v21, 5, v1
v_lshl_add_u32 v20, v21, 6, v20
v_add_u32 v20, s52, v20
s_waitcnt lgkmcnt(0)
ds_read_b128 v[4:7], v20
v_mov_b32 v22, {L_MISC}
s_mov_b32 s44, {OPT['spin']}
L_KVSYNC:
ds_read_b32 v23, v22
s_waitcnt lgkmcnt(0)
v_readfirstlane_b32 s45, v23
s_sub_u32 s44, s44, 1
s_cbranch_scc1 L_KVSYNCD
s_cmp_lt_u32 s45, 4
s_cbranch_scc1 L_KVSYNC
L_KVSYNCD:
""")
stamp("presync")
A(f"""
v_mov_b32 v102, 0
global_load_dwordx2 v[100:101], v102, {pp(P_DBG)} sc1
v_lshrrev_b32 v20, 2, v1
v_and_b32 v20, 3, v20
v_lshl_add_u32 v20, v16, 3, v20      ; 8*grp + r
v_lshlrev_b32 v20, 7, v20
v_and_b32 v21, 3, v1
v_lshl_add_u32 v20, v21, 3, v20
s_lshl_b32 s45, {sWAVE}, 5
s_add_u32 s45, s45, {L_KT}
v_add_u32 v20, s45, v20
""")
for o in range(2):
    kb, vb = 24 + 10 * o, 30 + 10 * o
    for q in range(3):
        A(f"ds_read_b64_tr_b16 {vr(kb+2*q,2)}, v20 offset:{o*4096 + (4+4*q)*128}")
    for q in range(2):
        A(f"ds_read_b64_tr_b16 {vr(vb+2*q,2)}, v20 offset:{9216 + o*4096 + 4*q*128}")
A(f"""
v_lshlrev_b32 v44, 16, v14
v_and_b32 v45, 0xffff0000, v14
v_lshlrev_b32 v46, 16, v15
v_and_b32 v47, 0xffff0000, v15
v_lshlrev_b32 v12, 12, v11
v_lshlrev_b32 v13, 4, v16
v_sub_u32 v12, v12, v13
v_add_u32 v12, 48, v12
s_lshl_b32 s45, {sTB}, 7
s_sub_u32 s45, {WS_UR + 4080 - 64 - 48}, s45
""")
for o in range(2):
    kb, vb = 24 + 10 * o, 30 + 10 * o
    A(f"s_waitcnt lgkmcnt({5 - 5*o})")
    for e in range(1, 12):
        if e % 2 == 0: A(f"v_lshlrev_b32 v{48+e}, 16, v{kb+e//2}")
        else: A(f"v_and_b32 v{48+e}, 0xffff0000, v{kb+e//2}")
    for e in range(8):
        if e % 2 == 0: A(f"v_lshlrev_b32 v{60+e}, 16, v{vb+e//2}")
        else: A(f"v_and_b32 v{60+e}, 0xffff0000, v{vb+e//2}")
    for t in range(8):
        A(f"v_mul_f32 v{68+t}, v{48+4+t}, v44")
    for j in range(1, 4):
        for t in range(8):
            A(f"v_fmac_f32 v{68+t}, v{48+4+t-j}, v{44+j}")
    for t in range(8):
        A(f"v_mul_f32 v{68+t}, v{68+t}, v{60+t}")
    ob = 76 + 4 * o
    for d in range(4):
        A(f"v_cvt_pk_bf16_f32 v{ob+d}, v{68+7-2*d}, v{68+6-2*d}")
    A(f"buffer_store_dwordx4 {vr(ob,4)}, v12, {srd(SWS)}, s45 offen offset:{64 - 64*o} sc1")
stamp("predone")

VXA, VWA = 8, 12
A(f"""
s_and_b32 s53, {sWAVE}, 1            ; hp
s_lshr_b32 s54, {sWAVE}, 1           ; rt
v_and_b32 v16, 31, v1
v_lshrrev_b32 v17, 5, v1             ; hh
v_lshrrev_b32 v18, 4, v16
v_lshlrev_b32 v18, 13, v18
v_and_b32 v19, 15, v16
v_lshl_add_u32 v18, v19, 7, v18
s_lshl_b32 s45, s54, 14
v_add_u32 v18, s45, v18
v_lshrrev_b32 v19, 1, v19            ; f(r)
v_xor_b32 v19, v19, v17              ; f ^ hh
""")
for s in range(4):
    A(f"v_xor_b32 v20, {2*s}, v19\nv_lshl_add_u32 v{VXA+s}, v20, 4, v18\nv_add_u32 v{104+s}, 0x10000, v{VXA+s}")
A(f"""
v_lshrrev_b32 v20, 2, v1
v_and_b32 v20, 3, v20                ; r
v_lshrrev_b32 v21, 1, v20
v_xor_b32 v21, s53, v21              ; hp ^ (r>>1)
v_lshlrev_b32 v21, 6, v21
v_lshl_add_u32 v21, v20, 7, v21
v_lshrrev_b32 v22, 4, v1
v_and_b32 v22, 1, v22
v_lshl_add_u32 v21, v22, 5, v21
v_and_b32 v22, 3, v1
v_lshl_add_u32 v21, v22, 3, v21
v_mul_u32_u24 v22, 3072, v17
v_add3_u32 v{VWA}, v21, v22, 0
v_add_u32 v{VWA}, 2048, v{VWA}
v_add_u32 v108, 0x10000, v{VWA}
""")
AQ, AK, AV = 16, 32, 48
FX = [64, 68]; FW = [72, 84]
def gemm_reads(c, s):
    sl = SLOT(c); hi = sl >= 65536; off = sl - (65536 if hi else 0)
    xa = (104 if hi else VXA) + s; wa = 108 if hi else VWA
    b = s & 1
    A(f"ds_read_b128 {vr(FX[b],4)}, v{xa} offset:{off}")
    for sec in range(3):
        for half in range(2):
            A(f"ds_read_b64_tr_b16 {vr(FW[b]+4*sec+2*half,2)}, v{wa} offset:{off + s*8192 + sec*1024 + half*512}")
def gemm_mfma(c, s):
    b = s & 1
    first = (c == 0 and s == 0)
    cq = "0" if first else vr(AQ, 16); ck = "0" if first else vr(AK, 16); cv = "0" if first else vr(AV, 16)
    A(f"v_mfma_f32_32x32x16_bf16 {vr(AK,16)}, {vr(FW[b]+4,4)}, {vr(FX[b],4)}, {ck}")
    A(f"v_mfma_f32_32x32x16_bf16 {vr(AV,16)}, {vr(FX[b],4)}, {vr(FW[b]+8,4)}, {cv}")
    A(f"v_mfma_f32_32x32x16_bf16 {vr(AQ,16)}, {vr(FW[b],4)}, {vr(FX[b],4)}, {cq}")
for c in range(8):
    A("s_barrier")
    stamp(f"b{c}")
    gemm_reads(c, 0); gemm_reads(c, 1)
    if c == 1:
        A(f"""
        s_waitcnt vmcnt(0)
        v_readfirstlane_b32 s42, v100
        v_readfirstlane_b32 s43, v101
        s_cmp_lg_u32 s42, 0
        s_cbranch_scc1 L_HAVENON
        """)
        get_nonce(100)
        A(f"""
        L_HAVENON:
        s_lshl_b32 s45, {sCG}, 2
        s_add_u32 s45, s45, {sWAVE}
        s_lshl_b32 s45, s45, 5
        s_add_u32 s45, s45, {sTB}
        s_lshl_b32 s45, s45, 3
        s_add_u32 s45, s45, {F3}
        """)
        flag_store("s45", 100)
    if c == 5:
        A(f"""
        s_and_b32 s45, s51, 63
        s_lshr_b32 s45, s45, 4
        s_lshl_b32 s48, {sCG}, 2
        s_add_u32 s45, s45, s48
        s_lshl_b32 s45, s45, 8
        s_add_u32 s45, s45, {F3}
        v_lshlrev_b32 v102, 3, v1
        """)
        poll(32, "s45", 100, 102)
        A(f"""
        s_lshl_b32 s45, s51, 12
        s_lshl_b32 s48, s53, 11
        s_add_u32 s45, s45, s48
        s_add_u32 s45, s45, {WS_UR}
        s_mul_i32 s49, s54, {URSTR}
        s_add_u32 s49, s49, s48
        s_add_u32 m0, s49, {L_UR}
        v_lshlrev_b32 v102, 4, v1
        buffer_load_dwordx4 v102, {srd(SWS)}, s45 offen sc1 lds
        buffer_load_dwordx4 v102, {srd(SWS)}, s45 offen offset:1024 sc1 lds
        """)
    A("s_waitcnt lgkmcnt(7)"); gemm_mfma(c, 0)
    gemm_reads(c, 2)
    A("s_waitcnt lgkmcnt(7)"); gemm_mfma(c, 1)
    gemm_reads(c, 3)
    A("s_waitcnt lgkmcnt(7)"); gemm_mfma(c, 2)
    A("s_waitcnt lgkmcnt(0)"); gemm_mfma(c, 3)
stamp("gemmend")
A(f"""
s_lshl_b32 s45, {sHG}, 6
s_lshl_b32 s48, {sRB}, 1
s_add_u32 s45, s45, s48
s_add_u32 s45, s45, s54
s_lshl_b32 s45, s45, 13
s_lshl_b32 s48, s53, 11
s_add_u32 s45, s45, s48              ; + hp*2048
s_add_u32 s49, s45, 4096
v_lshlrev_b32 v102, 4, v1
s_lshl_b32 s55, s54, 13
s_sub_u32 s55, {L_KV + 8192}, s55
s_add_u32 s55, s55, s48
v_add_u32 v103, s55, v102
s_lshl_b32 s55, s54, 12
s_add_u32 s55, s55, s48
v_add_u32 v100, s55, v102
s_mov_b32 s55, {f32(0.25 * LOG2E)}
""")
for i in range(8): A(f"v_cvt_pk_bf16_f32 v{64+i}, v{AK+2*i}, v{AK+2*i+1}")
A(f"buffer_store_dwordx4 v[64:67], v102, {srd(SWS)}, s45 offen sc1")
A(f"buffer_store_dwordx4 v[68:71], v102, {srd(SWS)}, s45 offen offset:1024 sc1")
for i in range(8): A(f"v_cvt_pk_bf16_f32 v{72+i}, v{AV+2*i}, v{AV+2*i+1}")
A(f"buffer_store_dwordx4 v[72:75], v102, {srd(SWS)}, s49 offen sc1")
A(f"buffer_store_dwordx4 v[76:79], v102, {srd(SWS)}, s49 offen offset:1024 sc1")
A("ds_write_b128 v103, v[64:67]\nds_write_b128 v103, v[68:71] offset:1024")
A("ds_write_b128 v103, v[72:75] offset:4096\nds_write_b128 v103, v[76:79] offset:5120")
for i in range(16): A(f"v_mul_f32 v{AQ+i}, s55, v{AQ+i}")
for i in range(8): A(f"v_cvt_pk_bf16_f32 v{80+i}, v{AQ+2*i}, v{AQ+2*i+1}")
A("ds_write_b128 v100, v[80:83]\nds_write_b128 v100, v[84:87] offset:1024")
A(f"""
v_and_b32 v16, 15, v1
v_lshrrev_b32 v17, 4, v1             ; g
v_add_u32 v18, 1, v16                ; beta
v_and_b32 v19, 3, v18
v_mul_u32_u24 v19, {HSTR}, v19
v_and_b32 v18, 28, v18
v_lshl_add_u32 v18, v17, 3, v18
v_lshl_add_u32 v8, v18, 1, v19
s_mul_i32 s45, s54, {4*HSTR}
s_lshl_b32 s48, s53, 8
s_add_u32 s45, s45, s48
s_add_u32 s45, s45, {L_H}
v_add_u32 v8, s45, v8                ; A addr
v_lshlrev_b32 v18, 5, v16
v_lshlrev_b32 v19, 4, v17
v_sub_u32 v9, v19, v18               ; 16g - 32a
s_mul_i32 s45, s54, {URSTR}
s_add_u32 s49, s45, s48
s_add_u32 s49, s49, {L_UR + 512}
v_add_u32 v9, s49, v9                ; G addr
v_and_b32 v19, 16, v19               ; 16*(g&1)
v_sub_u32 v10, v19, v18
s_lshl_b32 s48, s53, 11
s_sub_u32 s45, s45, s48
s_add_u32 s45, s45, {L_UR + 4064 - 1536}
v_add_u32 v10, s45, v10
s_waitcnt vmcnt(4) lgkmcnt(0)
s_barrier
""")
stamp("ba")
CA = [64, 128]; CG = [96, 160]; ACC = 16
def conv_reads(s):
    b = s & 1
    out = []
    for i in range(8):
        out.append(f"ds_read_b128 {vr(CG[b]+4*i,4)}, v9 offset:{512*(7-i) + 64*s}")
        out.append(f"ds_read_b64 {vr(CA[b]+4*i,2)}, v8 offset:{512*i + 64*s}")
        out.append(f"ds_read_b64 {vr(CA[b]+4*i+2,2)}, v8 offset:{512*i + 64*s + 8}")
    return out
def conv_mfmas(s):
    b = s & 1
    out = []
    seen = set()
    pairs = sorted([(i, d) for i in range(8) for d in range(8) if i + d <= 7], key=lambda p: (max(p), p[0] + p[1]))
    for i, d in pairs:
        j = i + d
        c = "0" if (s == 0 and j not in seen) else vr(ACC + 4*j, 4)
        seen.add(j)
        out.append((max(i, d), f"v_mfma_f32_16x16x32_bf16 {vr(ACC+4*j,4)}, {vr(CA[b]+4*i,4)}, {vr(CG[b]+4*d,4)}, {c}"))
    return out
for r in conv_reads(0): A(r)
for jj in range(4): A(f"ds_read_b128 {vr(48+4*jj,4)}, v10 offset:{512*(3-jj)}")
A("s_waitcnt lgkmcnt(0)")
for s in range(4):
    nxt = conv_reads(s + 1) if s < 3 else []
    mm = conv_mfmas(s)
    for n, (lvl, m) in enumerate(mm):
        A(m)
        if n < len(nxt): A(nxt[n])
    if s == 1:
        A(f"""
        s_waitcnt vmcnt(0)
        s_lshl_b32 s45, {sHG}, 5
        s_add_u32 s45, s45, {sRB}
        s_lshl_b32 s45, s45, 2
        s_add_u32 s45, s45, {sWAVE}
        s_lshl_b32 s45, s45, 3
        s_add_u32 s45, s45, {F1}
        """)
        flag_store("s45", 12)
    A("s_waitcnt lgkmcnt(0)")
A(f"""
s_lshl_b32 s45, {sWAVE}, 12
s_add_u32 s45, s45, {L_SCR}
v_lshl_add_u32 v11, v1, 4, s45
""")
assert True
A(f"""
s_xor_b32 s48, {sWAVE}, 1
s_lshl_b32 s48, s48, 12
s_add_u32 s48, s48, {L_SCR}
v_lshl_add_u32 v12, v1, 4, s48
s_cmp_eq_u32 s53, 0
s_cbranch_scc0 L_KH1
""")
for jj in range(4): A(f"v_mfma_f32_16x16x32_bf16 {vr(ACC+4*jj,4)}, v[4:7], {vr(48+4*jj,4)}, {vr(ACC+4*jj,4)}")
for jj in range(4): A(f"ds_write_b128 v11, {vr(ACC+16+4*jj,4)} offset:{1024*jj}")
A("s_branch L_KHD\nL_KH1:")
for jj in range(4): A(f"ds_write_b128 v11, {vr(ACC+4*jj,4)} offset:{1024*jj}")
A("s_waitcnt lgkmcnt(0)")
for jj in range(4): A(f"v_mfma_f32_16x16x32_bf16 {vr(ACC+4*jj,4)}, v[4:7], {vr(48+4*jj,4)}, {vr(ACC+16+4*jj,4)}")
A("L_KHD:")
stamp("convend")
A("s_waitcnt lgkmcnt(0)\ns_barrier")
stamp("bb")
for jj in range(4): A(f"ds_read_b128 {vr(48+4*jj,4)}, v12 offset:{1024*jj}")
A(f"""
v_and_b32 v13, 15, v1
v_lshlrev_b32 v13, 5, v13
v_lshrrev_b32 v14, 4, v1
v_lshl_add_u32 v13, v14, 3, v13
s_lshl_b32 s45, s51, 12
s_lshl_b32 s48, s53, 11
s_add_u32 s45, s45, s48
s_add_u32 s45, s45, {WS_Y}
s_waitcnt lgkmcnt(0)
""")
for i in range(16): A(f"v_add_f32 v{ACC+i}, v{ACC+i}, v{48+i}")
for jj in range(4):
    A(f"v_cvt_pk_bf16_f32 v{64+2*jj}, v{ACC+4*jj}, v{ACC+4*jj+1}\nv_cvt_pk_bf16_f32 v{65+2*jj}, v{ACC+4*jj+2}, v{ACC+4*jj+3}")
    A(f"buffer_store_dwordx2 {vr(64+2*jj,2)}, v13, {srd(SWS)}, s45 offen offset:{512*jj} sc1")
A("s_branch L_ATT")

A("L_LOADER:")
mksrd(SX, P_X, 0x200000); mksrd(SW, P_W, 0x180000)
A(f"""
s_sub_u32 s56, {sWAVE}, 4            ; lw
v_lshrrev_b32 v8, 3, v1
v_and_b32 v9, 7, v1
v_lshrrev_b32 v10, 4, v1
v_xor_b32 v11, v9, v10               ; jj = (l&7) ^ (l>>4)
v_lshlrev_b32 v12, 10, v8
v_lshl_add_u32 v4, v11, 4, v12       ; x voffset i=0
v_xor_b32 v5, 64, v4                 ; i=1 (chunk ^4)
v_and_b32 v10, 1, v10
v_lshlrev_b32 v10, 2, v10
v_xor_b32 v10, v9, v10
v_mul_u32_u24 v6, 3072, v8
v_lshl_add_u32 v6, v10, 4, v6        ; W voffset
v_lshlrev_b32 v13, 4, v11
s_lshl_b32 s57, {sRB}, 16
s_lshl_b32 s45, s56, 14
s_add_u32 s57, s57, s45              ; x base
s_mul_i32 s58, s56, 49152
s_lshl_b32 s45, {sHG}, 7
s_add_u32 s58, s58, s45              ; W base
s_lshl_b32 s59, s56, 13
""")
if OPT["rot"] == 0: A("s_mov_b32 s60, 0")
elif OPT["rot"] == 1: A(f"s_lshl_b32 s60, {sRB}, 1\ns_add_u32 s60, s60, {sHG}\ns_and_b32 s60, s60, 7")
elif OPT["rot"] == 2: A(f"s_and_b32 s60, {sCG}, 7")
def issue_chunk(c):
    sl = SLOT(c)
    A(f"""
    s_lshl_b32 s45, s60, 7
    s_add_u32 s45, s45, s57
    s_mul_i32 s48, s60, 196608
    s_add_u32 s48, s48, s58
    s_add_u32 m0, s59, {sl}
    s_add_u32 s49, s45, 8192
    buffer_load_dwordx4 v4, {srd(SX)}, s45 offen lds
    s_add_u32 m0, s59, {sl+1024}
    s_add_u32 s50, s48, 24576
    buffer_load_dwordx4 v5, {srd(SX)}, s49 offen lds
    s_add_u32 m0, s59, {sl+2048}
    s_add_u32 s60, s60, 1
    buffer_load_dwordx4 v6, {srd(SW)}, s48 offen lds
    buffer_load_dwordx4 v6, {srd(SW)}, s48 offen offset:1024 lds
    buffer_load_dwordx4 v6, {srd(SW)}, s48 offen offset:2048 lds
    s_add_u32 m0, s59, {sl+5120}
    s_and_b32 s60, s60, 7
    buffer_load_dwordx4 v6, {srd(SW)}, s50 offen lds
    buffer_load_dwordx4 v6, {srd(SW)}, s50 offen offset:1024 lds
    buffer_load_dwordx4 v6, {srd(SW)}, s50 offen offset:2048 lds
    """)
issue_chunk(0)
A("s_sub_u32 s61, s60, 1")
for c in range(8):
    A(f"s_and_b32 s61, s61, 7\ns_lshl_b32 s45, s61, 7\nv_add_u32 v14, s45, v13\nglobal_load_dwordx4 {vr(32+4*c,4)}, v14, {pp(P_GW)}\ns_add_u32 s61, s61, 1")
for c in range(1, 4): issue_chunk(c)
A(f"""
v_lshl_add_u32 v14, v1, 4, s59
v_xor_b32 v15, 64, v14
v_add_u32 v24, 0x10000, v14
v_add_u32 v25, 0x10000, v15
v_mov_b32 v26, 0
v_mov_b32 v27, 0
""")
mksrd(SH, P_H, 0)
for c in range(8):
    n = 24 if c == 0 else (16 if c <= 6 else 8)
    A(f"s_waitcnt vmcnt({n})\ns_barrier")
    stamp(f"b{c}")
    sl = SLOT(c); hi = sl >= 65536; off = sl - (65536 if hi else 0)
    A(f"ds_read_b128 v[16:19], v{24 if hi else 14} offset:{off}\nds_read_b128 v[20:23], v{25 if hi else 15} offset:{off+1024}")
    if 1 <= c <= 4: issue_chunk(c + 3)
    if c == 5:
        A(f"""
        s_lshl_b32 s45, {sCG}, 6
        s_lshl_b32 s48, {sTB}, 1
        s_add_u32 s51, s45, s48          ; c0
        s_lshl_b32 s45, s51, 12
        s_add_u32 s26, s45, 4096
        s_lshl_b32 s48, s56, 1
        s_add_u32 s45, s45, s48
        v_lshlrev_b32 v28, 4, v1
        v_add_u32 v28, s45, v28
        s_mul_i32 s49, s56, {HSTR}
        s_add_u32 m0, s49, {L_H}
        v_add_u32 v29, 4096, v28
        """)
        for i in range(4): A(f"buffer_load_dwordx4 v28, {srd(SH)}, 0 offen offset:{1024*i} lds")
        A(f"s_add_u32 s26, s26, 4096\ns_add_u32 m0, s49, {L_H + 4*HSTR}\ns_nop 0")
        for i in range(4): A(f"buffer_load_dwordx4 v29, {srd(SH)}, 0 offen offset:{1024*i} lds")
        A(f"""
        v_and_b32 v30, 15, v1
        v_lshlrev_b32 v30, 2, v30
        v_lshrrev_b32 v31, 4, v1
        v_and_b32 v31, 1, v31
        v_mul_u32_u24 v31, {4*HSTR}, v31
        s_add_u32 s49, s49, {L_H + 4096}
        v_add3_u32 v30, v30, v31, s49
        v_mov_b32 v31, 0
        ds_write_b32 v30, v31
        """)
    A("s_waitcnt lgkmcnt(0)")
    for i in range(4):
        A(f"v_dot2_f32_bf16 v26, v{16+i}, v{32+4*c+i}, v26\nv_dot2_f32_bf16 v27, v{20+i}, v{32+4*c+i}, v27")
get_nonce(16)
for r in (26, 27):
    A(f"v_add_f32_dpp v{r}, v{r}, v{r} quad_perm:[1,0,3,2] row_mask:0xf bank_mask:0xf")
for r in (26, 27):
    A(f"v_add_f32_dpp v{r}, v{r}, v{r} quad_perm:[2,3,0,1] row_mask:0xf bank_mask:0xf")
for r in (26, 27):
    A(f"v_add_f32_dpp v{r}, v{r}, v{r} row_half_mirror row_mask:0xf bank_mask:0xf")
A(f"s_mov_b32 s45, {f32(-LOG2E)}")
for r in (26, 27): A(f"v_mul_f32 v{r}, s45, v{r}")
for r in (26, 27): A(f"v_exp_f32 v{r}, v{r}")
for r in (26, 27): A(f"v_add_f32 v{r}, 1.0, v{r}")
for r in (26, 27): A(f"v_rcp_f32 v{r}, v{r}")
A(f"""
s_lshl_b32 s45, s56, 6
s_add_u32 s45, s45, {L_G}
v_lshl_add_u32 v28, v8, 2, s45
s_waitcnt vmcnt(0)
s_barrier
""")
stamp("ba")
A(f"""
ds_write_b32 v28, v26
ds_write_b32 v28, v27 offset:32
s_add_u32 s45, s56, 1
s_cmp_lt_u32 {sRB}, s45
s_cbranch_scc1 L_NOHALO2
s_sub_u32 s62, {sRB}, s45
s_lshl_b32 s45, {sHG}, 5
s_add_u32 s45, s45, s62
s_lshl_b32 s63, s45, 14
s_lshl_b32 s45, s45, 5
s_add_u32 s45, s45, {F1}
v_lshlrev_b32 v18, 3, v1
""")
poll(4, "s45", 16, 18)
stamp("f1seen")
A(f"""
v_lshlrev_b32 v18, 4, v1
s_lshl_b32 s48, s56, 14
""")
for t in (1, 0):
    for hf in range(2):
        A(f"s_add_u32 m0, s48, {L_KV + (3 - t)*8192 + hf*4096}\ns_add_u32 s45, s63, {t*8192 + hf*4096}")
        for i in range(4): A(f"buffer_load_dwordx4 v18, {srd(SWS)}, s45 offen offset:{1024*i} sc1 lds")
A("L_NOHALO2:\ns_waitcnt lgkmcnt(0)\ns_barrier")
stamp("bb")

A("L_ATT:")
mksrd(SWO, P_WO, 0x80000)
MD, MF = 16, 32
S = [48, 64]; P = 80; O = 88; KF = [104, 108]; VF = [112, 120]; QF = 4
A(f"""
s_and_b32 s53, {sWAVE}, 3
s_lshr_b32 s54, {sWAVE}, 2           ; qt
s_lshl_b32 s55, {sRB}, 1
s_add_u32 s55, s55, s54
s_add_u32 s55, s55, 1
s_min_u32 s55, s55, 9                ; ntiles
v_lshlrev_b32 v8, 4, v1
s_lshl_b32 s45, {sWAVE}, 10
v_add_u32 v9, s45, v8                ; Q addr
s_lshl_b32 s45, s54, 13
s_sub_u32 s45, {L_KV + 8192}, s45
s_lshl_b32 s48, s53, 10
s_add_u32 s48, s48, s45
v_add_u32 v10, s48, v8
s_lshr_b32 s48, s53, 1
s_lshl_b32 s48, s48, 11
s_add_u32 s48, s48, s45
s_and_b32 s49, s53, 1
s_lshl_b32 s49, s49, 8
s_add_u32 s48, s48, s49
s_add_u32 s48, s48, 4096
v_add_u32 v11, s48, v8               ; V addr
v_add_u32 v12, 0x8000, v10
v_add_u32 v13, 0x8000, v11
s_mov_b32 s60, 0x0000ffff
s_mov_b32 s61, 0x0000ffff
; masks
v_and_b32 v14, 31, v1
v_lshrrev_b32 v15, 5, v1
v_lshlrev_b32 v15, 2, v15
v_sub_u32 v14, v14, v15              ; n - 4hh
v_mov_b32 v15, 0xff800000
""")
for r in range(16):
    m = 8 * (r >> 2) + (r & 3)
    A(f"v_cmp_le_i32 vcc, {m}, v14\nv_cndmask_b32 v{MD+r}, v15, 0, vcc".replace("v15, 0, vcc", f"v15, v3, vcc"))
    A(f"v_cndmask_b32 v{MF+r}, v3, v15, vcc")
A.lines.insert(len(A.lines) - 48, "v_mov_b32 v3, 0")
for b in VF:
    for i in range(8): A(f"v_mov_b32 v{b+i}, 0x3f803f80")
A(f"""
v_lshrrev_b32 v14, 3, v1
v_and_b32 v15, 7, v1
v_lshrrev_b32 v128, 2, v1
v_and_b32 v128, 4, v128
v_xor_b32 v15, v15, v128
v_lshlrev_b32 v14, 10, v14
v_lshl_add_u32 v14, v15, 4, v14
s_lshl_b32 s62, {sWAVE}, 16
s_lshl_b32 s45, {sHG}, 7
s_add_u32 s62, s62, s45
s_lshl_b32 s63, {sWAVE}, 13
s_add_u32 s63, s63, {L_WO}
s_waitcnt vmcnt(0)
s_barrier
""")
stamp("bc")
A(f"""
s_cmp_lg_u32 {sWAVE}, 4
s_cbranch_scc1 L_NOF4
s_lshl_b32 s45, {sCG}, 5
s_add_u32 s45, s45, {sTB}
s_lshl_b32 s45, s45, 3
s_add_u32 s45, s45, {F4}
""")
flag_store("s45", 128)
A("L_NOF4:")
for i in range(8):
    A(f"s_add_u32 m0, s63, {1024*i}\ns_add_u32 s45, s62, {8192*i}\nbuffer_load_dwordx4 v14, {srd(SWO)}, s45 offen lds")
def rdK(j, dst):
    a, o = (10, j * 8192) if j < 4 else (12, (j - 4) * 8192)
    A(f"ds_read_b128 {vr(dst,4)}, v{a} offset:{o}")
def rdV(j, dst):
    a, o = (11, j * 8192) if j < 4 else (13, (j - 4) * 8192)
    A(f"s_mov_b64 exec, s[60:61]\nds_read_b128 {vr(dst,4)}, v{a} offset:{o}\nds_read_b128 {vr(dst+4,4)}, v{a} offset:{o+1024}\ns_mov_b64 exec, -1")
def cmask(j): return vr(MD, 16) if j == 0 else (vr(MF, 16) if j == 8 else "0")
A(f"ds_read_b128 {vr(QF,4)}, v9")
if OPT["force_slow"]: A("s_branch L_SLOW")
rdK(0, KF[0]); rdK(1, KF[1]); rdV(0, VF[0])
A("s_waitcnt lgkmcnt(3)")
A(f"v_mfma_f32_32x32x16_bf16 {vr(S[0],16)}, {vr(KF[0],4)}, {vr(QF,4)}, {cmask(0)}")
for j in range(9):
    sb = S[j & 1]; vb = VF[j & 1]
    if j < 8:
        A("s_waitcnt lgkmcnt(2)")
        A(f"v_mfma_f32_32x32x16_bf16 {vr(S[(j+1)&1],16)}, {vr(KF[(j+1)&1],4)}, {vr(QF,4)}, {cmask(j+1)}")
    if j < 7: rdK(j + 2, KF[j & 1])
    if j < 8: rdV(j + 1, VF[(j + 1) & 1])
    for i in range(8): A(f"v_exp_f32 v{sb+i}, v{sb+i}")
    for i in range(4): A(f"v_cvt_pk_bf16_f32 v{P+i}, v{sb+2*i}, v{sb+2*i+1}")
    for i in range(8, 10): A(f"v_exp_f32 v{sb+i}, v{sb+i}")
    A(f"s_waitcnt lgkmcnt({3 if j < 7 else (2 if j < 8 else 0)})")
    A(f"v_mfma_f32_32x32x16_bf16 {vr(O,16)}, {vr(vb,4)}, {vr(P,4)}, {'0' if j == 0 else vr(O,16)}")
    for i in range(10, 16): A(f"v_exp_f32 v{sb+i}, v{sb+i}")
    for i in range(4, 8): A(f"v_cvt_pk_bf16_f32 v{P+i}, v{sb+2*i}, v{sb+2*i+1}")
    if j < 8: A(f"s_cmp_eq_u32 s55, {j+1}")
    A(f"v_mfma_f32_32x32x16_bf16 {vr(O,16)}, {vr(vb+4,4)}, {vr(P+4,4)}, {vr(O,16)}")
    if j < 8: A("s_cbranch_scc1 L_ATTFIN")
A(f"""
L_ATTFIN:
s_waitcnt lgkmcnt(0)
s_mov_b32 s45, {f32(2.0**-30)}
s_mov_b32 s48, {f32(2.0**30)}
v_cmp_ngt_f32 vcc, v{O+8}, s45
""".replace(f"v_cmp_ngt_f32 vcc, v{O+8}, s45", f"v_cmp_nlt_f32 vcc, s45, v{O+8}"))
A(f"""
v_cmp_ngt_f32 s[50:51], s48, v{O+8}
s_or_b64 vcc, vcc, s[50:51]
s_cbranch_vccnz L_SLOW
L_ATTNORM:
v_rcp_f32 v{O+8}, v{O+8}
s_lshl_b32 s45, {sRB}, 1
s_add_u32 s45, s45, s54
s_lshl_b32 s45, s45, 5
s_lshl_b32 s48, {sHG}, 2
s_add_u32 s45, s45, s48
s_add_u32 s45, s45, s53
s_lshl_b32 s45, s45, 10
s_add_u32 s45, s45, {WS_O}
""")
for i in range(8): A(f"v_mul_f32 v{O+i}, v{O+i}, v{O+8}")
for i in range(4): A(f"v_cvt_pk_bf16_f32 v{P+i}, v{O+2*i}, v{O+2*i+1}")
A(f"buffer_store_dwordx4 {vr(P,4)}, v8, {srd(SWS)}, s45 offen sc1")
stamp("attend")
A("s_waitcnt vmcnt(0)\ns_barrier")
stamp("bd")

A(f"""
s_cmp_ge_u32 {sWAVE}, 4
s_cbranch_scc1 L_FHELP
""")
mksrd(SX, P_X, 0x200000)
A(f"""
s_and_b32 s53, {sWAVE}, 1            ; ct
s_lshr_b32 s54, {sWAVE}, 1           ; rt
v_and_b32 v10, 31, v1
v_lshrrev_b32 v11, 5, v1
v_lshlrev_b32 v12, 10, v10
v_lshl_add_u32 v12, v11, 5, v12
s_lshl_b32 s45, {sRB}, 16
s_lshl_b32 s48, s54, 15
s_add_u32 s45, s45, s48
s_lshl_b32 s48, {sHG}, 7
s_add_u32 s45, s45, s48
s_lshl_b32 s48, s53, 6
s_add_u32 s56, s45, s48
buffer_load_dwordx4 v[16:19], v12, {srd(SX)}, s56 offen
buffer_load_dwordx4 v[20:23], v12, {srd(SX)}, s56 offen offset:16
; gate
s_lshl_b32 s45, s54, 7
s_add_u32 s45, s45, {L_G}
v_lshl_add_u32 v13, v10, 2, s45
ds_read_b32 v9, v13
v_lshrrev_b32 v13, 2, v1
v_and_b32 v13, 3, v13                ; r
v_lshrrev_b32 v14, 1, v13
v_xor_b32 v14, s53, v14
v_lshlrev_b32 v14, 6, v14
v_lshl_add_u32 v15, v11, 2, v13
v_lshl_add_u32 v14, v15, 7, v14
v_and_b32 v15, 1, v1
v_lshl_add_u32 v14, v15, 5, v14
v_lshrrev_b32 v15, 4, v1
v_and_b32 v15, 1, v15
v_lshl_add_u32 v14, v15, 4, v14
v_lshrrev_b32 v24, 1, v1
v_and_b32 v24, 1, v24
v_lshl_add_u32 v14, v24, 3, v14
v_add_u32 v14, {L_WO}, v14
v_lshl_add_u32 v24, v11, 4, v13
v_lshlrev_b32 v24, 7, v24
v_lshl_add_u32 v24, v15, 5, v24
v_and_b32 v25, 3, v1
v_lshl_add_u32 v24, v25, 3, v24
s_lshl_b32 s45, s53, 12
s_lshl_b32 s48, s54, 6
s_add_u32 s45, s45, s48
s_add_u32 s45, s45, {L_Y}
v_add_u32 v24, s45, v24
""")
for k in range(32):
    A(f"ds_read_b64_tr_b16 {vr(128+4*k,2)}, v14 offset:{k*2048}\nds_read_b64_tr_b16 {vr(130+4*k,2)}, v14 offset:{k*2048+1024}")
A("s_branch L_FBE\nL_FHELP:")
A(f"""
s_cmp_eq_u32 {sWAVE}, 4
s_cbranch_scc1 L_FW4
s_cmp_eq_u32 {sWAVE}, 5
s_cbranch_scc0 L_FBE
s_lshl_b32 s45, {sHG}, 8
s_add_u32 s45, s45, {F4}
v_lshlrev_b32 v18, 3, v1
""")
poll(32, "s45", 16, 18)
A(f"""
v_lshrrev_b32 v18, 3, v1
v_lshlrev_b32 v18, 12, v18
v_and_b32 v19, 7, v1
v_lshl_add_u32 v18, v19, 4, v18
s_lshl_b32 s48, {sHG}, 18
s_lshl_b32 s45, {sRB}, 7
s_add_u32 s48, s48, s45
s_add_u32 s48, s48, {WS_Y}
""")
for i in range(8):
    A(f"s_mov_b32 m0, {L_Y + 1024*i}\ns_add_u32 s45, s48, {32768*i}\nbuffer_load_dwordx4 v18, {srd(SWS)}, s45 offen sc1 lds")
A(f"""
s_waitcnt vmcnt(0)
s_branch L_FBE
L_FW4:
s_lshl_b32 s48, {sRB}, 7
s_add_u32 s48, s48, {F2}
s_lshl_b32 s45, {sHG}, 3
s_add_u32 s45, s45, s48
""")
flag_store("s45", 16)
A("v_lshlrev_b32 v18, 3, v1")
poll(8, "s48", 16, 18)
A(f"""
L_FBE:
s_barrier
""")
stamp("be")
A(f"""
s_lshl_b32 s45, {sRB}, 16
s_lshl_b32 s48, {sWAVE}, 13
s_add_u32 s45, s45, s48
s_add_u32 s45, s45, {WS_O}
s_add_u32 s49, s45, 4096
s_add_u32 m0, s48, {L_O}
s_nop 0
""")
for i in range(4): A(f"buffer_load_dwordx4 v8, {srd(SWS)}, s45 offen offset:{1024*i} sc1 lds")
A(f"s_add_u32 m0, s48, {L_O + 4096}\ns_nop 0")
for i in range(4): A(f"buffer_load_dwordx4 v8, {srd(SWS)}, s49 offen offset:{1024*i} sc1 lds")
A(f"""
s_cmp_ge_u32 {sWAVE}, 4
s_cbranch_scc1 L_FH2
""")
mksrd(SOUT, P_OUT, 0x200000)
for q in range(4): A(f"ds_read_b64_tr_b16 {vr(32+2*q,2)}, v24 offset:{512*q}")
A(f"""
s_lshl_b32 s45, s54, 15
s_add_u32 s45, s45, {L_O}
v_add_u32 v25, s45, v8
s_waitcnt vmcnt(8) lgkmcnt(0)
v_sub_f32 v26, 1.0, v9
""")
BT = 48
for e in range(16):
    if e % 2 == 0:
        A(f"v_lshlrev_b32 v{BT+e}, 16, v{16+e//2}\nv_lshlrev_b32 v27, 16, v{32+e//2}")
    else:
        A(f"v_and_b32 v{BT+e}, 0xffff0000, v{16+e//2}\nv_and_b32 v27, 0xffff0000, v{32+e//2}")
    A(f"v_mul_f32 v{BT+e}, v{BT+e}, v27\nv_mul_f32 v{BT+e}, v{BT+e}, v26")
A("s_waitcnt vmcnt(0)\ns_barrier")
stamp("bf")
OA = 64; OF = 80
NB = 8
for k in range(NB): A(f"ds_read_b128 {vr(OF+4*k,4)}, v25 offset:{1024*k}")
for k in range(32):
    rem = min(NB - 1, 31 - k)
    A(f"s_waitcnt lgkmcnt({rem})")
    A(f"v_mfma_f32_32x32x16_bf16 {vr(OA,16)}, {vr(128+4*k,4)}, {vr(OF+4*(k%NB),4)}, {'0' if k == 0 else vr(OA,16)}")
    if k + NB < 32: A(f"ds_read_b128 {vr(OF+4*(k%NB),4)}, v25 offset:{1024*(k+NB)}")
stamp("mmend")
for e in range(16): A(f"v_fmac_f32 v{BT+e}, v9, v{OA+e}")
for i in range(8): A(f"v_cvt_pk_bf16_f32 v{16+i}, v{BT+2*i}, v{BT+2*i+1}")
A(f"buffer_store_dwordx4 v[16:19], v12, {srd(SOUT)}, s56 offen\nbuffer_store_dwordx4 v[20:23], v12, {srd(SOUT)}, s56 offen offset:16")
A("s_branch L_FIN\nL_FH2:\ns_waitcnt vmcnt(0)\ns_barrier\nL_FIN:")
if OPT["stamps"]:
    A("s_waitcnt vmcnt(0)")
    stamp("end")
    A(f"""
    s_memrealtime s[98:99]
    s_waitcnt lgkmcnt(0)
    v_writelane_b32 v2, s98, 63
    v_writelane_b32 v2, s46, 62
    s_lshl_b32 s45, s2, 3
    s_add_u32 s45, s45, {sWAVE}
    s_lshl_b32 s45, s45, 8
    s_add_u32 s45, s45, {WS_ST}
    v_lshlrev_b32 v3, 2, v1
    buffer_store_dword v2, v3, {srd(SWS)}, s45 offen
    """)
A("L_END:\ns_endpgm")

A("L_SLOW:\ns_waitcnt lgkmcnt(0)\nv_mov_b32 v129, 0xff800000")
for j in range(9):
    rdK(j, KF[0])
    A("s_waitcnt lgkmcnt(0)")
    A(f"v_mfma_f32_32x32x16_bf16 {vr(S[0],16)}, {vr(KF[0],4)}, {vr(QF,4)}, {cmask(j)}")
    for i in range(0, 16, 2): A(f"v_max3_f32 v129, v{S[0]+i}, v{S[0]+i+1}, v129")
    if j < 8: A(f"s_cmp_eq_u32 s55, {j+1}\ns_cbranch_scc1 L_SLOW2")
A("L_SLOW2:\nv_mov_b32 v130, v129\nv_permlane32_swap_b32 v129, v130\nv_max_f32 v129, v129, v130")
for j in range(9):
    rdK(j, KF[0]); rdV(j, VF[0])
    A("s_waitcnt lgkmcnt(0)")
    A(f"v_mfma_f32_32x32x16_bf16 {vr(S[0],16)}, {vr(KF[0],4)}, {vr(QF,4)}, {cmask(j)}")
    for i in range(16): A(f"v_sub_f32 v{S[0]+i}, v{S[0]+i}, v129")
    for i in range(16): A(f"v_exp_f32 v{S[0]+i}, v{S[0]+i}")
    for i in range(8): A(f"v_cvt_pk_bf16_f32 v{P+i}, v{S[0]+2*i}, v{S[0]+2*i+1}")
    A(f"v_mfma_f32_32x32x16_bf16 {vr(O,16)}, {vr(VF[0],4)}, {vr(P,4)}, {'0' if j == 0 else vr(O,16)}")
    A(f"v_mfma_f32_32x32x16_bf16 {vr(O,16)}, {vr(VF[0]+4,4)}, {vr(P+4,4)}, {vr(O,16)}")
    if j < 8: A(f"s_cmp_eq_u32 s55, {j+1}\ns_cbranch_scc1 L_ATTNORM")
A("s_branch L_ATTNORM")

n = A.fix(verbose=bool(OPT.get("verbose", 0)))
label = NAME + "_kernel"
hdr = open("cdna_kernels/" + NAME + ".s.ref").read().split("; Override launch")[0]
out = hdr + f"""; @launch grid=(256,1,1) block=(512,1,1) lds=163840
.amdgcn_target "amdgcn-amd-amdhsa--gfx950"
.text
.globl {label}
.p2align 8
.type {label},@function
{label}:
{A.text()}
.section .rodata,"a"
.p2align 6
.amdhsa_kernel {label}
  .amdhsa_next_free_vgpr 256
  .amdhsa_next_free_sgpr 102
  .amdhsa_accum_offset 256
  .amdhsa_group_segment_fixed_size 0
  .amdhsa_kernarg_size 104
  .amdhsa_user_sgpr_count 2
  .amdhsa_user_sgpr_kernarg_segment_ptr 1
  .amdhsa_system_sgpr_workgroup_id_x 1
.end_amdhsa_kernel
"""
open(sys.argv[1], "w").write(out)
print(f"wrote {sys.argv[1]}: {len(A.lines)} lines, {n} nops inserted; stamps {STN}")
```

```python
import sys, math
sys.path.insert(0, "gen")
from asmx import Asm

NAME = "gated_mix__sliding_block__ssm_conv_h3__prompt"
OPT = dict(stamps=0, rot=0, force_slow=0, spin=1 << 20)
for a in sys.argv[2:]:
    k, v = a.split("="); OPT[k] = v if k == "echo" else int(v, 0)

WS_KV, WS_O, WS_UR, WS_Y, WS_F, WS_ST, WS_SIZE = 0, 0x400000, 0x600000, 0x800000, 0xA00000, 0xB00000, 0xC00000
F3, F1, F4, F2 = WS_F, WS_F + 0x2000, WS_F + 0x4000, WS_F + 0x6000
SLOT = lambda c: ((c + 3) % 4) * 32768
L_H = 98304; HSTR = 4160
L_UR = 131584; URSTR = 4608
L_MISC = 140800
L_KT = 146432
L_VT = L_KT + 9216
L_SCR = L_KT
L_Q = 0; L_KV = 8192
L_G = 90112
L_WO = 98304; L_O = 0; L_Y = 65536
LOG2E = math.log2(math.e)
def f32(x):
    import struct
    return "0x%08x" % struct.unpack("<I", struct.pack("<f", x))[0]

SX, SW, SWO, SK, SV, SH, SWS, SOUT = 4, 8, 12, 16, 20, 24, 28, 32
srd = lambda b: f"s[{b}:{b+3}]"
sWAVE, sRB, sHG, sCG, sTB = "s36", "s37", "s38", "s39", "s40"
sNON = "s[42:43]"
P_X, P_W, P_WO, P_K, P_V, P_SK, P_H, P_D, P_GW, P_OUT, P_DBG, P_WS = 64, 66, 68, 72, 74, 76, 78, 80, 82, 84, 86, 88
pp = lambda p: f"s[{p}:{p+1}]"

A = Asm()
nst = [0]
def stamp(name):
    if OPT.get("echo") == name:
        A("s_memrealtime s[98:99]\ns_waitcnt lgkmcnt(0)\ns_sub_u32 s97, s98, s96")
    if not OPT["stamps"]: return
    A(f"s_memtime s[98:99]\ns_waitcnt lgkmcnt(0)\nv_writelane_b32 v2, s98, {STN[name]}")
STN = {}
for i, n in enumerate("start ptrs kvland presync predone b0 b1 b2 b3 b4 b5 b6 b7 gemmend ba convend bb bc attend bd be bf mmend end f1seen halo".split()):
    STN[n] = i

def mksrd(b, p, size):
    A(f"s_mov_b32 s{b}, s{p}\ns_and_b32 s{b+1}, s{p+1}, 0xffff\ns_mov_b32 s{b+2}, {size}\ns_mov_b32 s{b+3}, 0x20000")

def vr(b, n): return f"v[{b}:{b+n-1}]"

def get_nonce(vt):
    l = A.lab("NON"); d = A.lab("NOND")
    A(f"""
    v_mov_b32 v{vt+2}, 0
    s_mov_b32 s44, {OPT['spin']}
    {l}:
    global_load_dwordx2 {vr(vt,2)}, v{vt+2}, {pp(P_DBG)} sc1
    s_waitcnt vmcnt(0)
    v_readfirstlane_b32 s42, v{vt}
    v_readfirstlane_b32 s43, v{vt+1}
    s_sub_u32 s44, s44, 1
    s_cbranch_scc1 {d}
    s_cmp_eq_u32 s42, 0
    s_cbranch_scc1 {l}
    {d}:
    """)

def poll(nl, soff, vt, vaddr):
    l = A.lab("POLL"); d = A.lab("POLLD")
    mask = (1 << nl) - 1
    if nl <= 32:
        A(f"s_mov_b32 exec_lo, {hex(mask)}\ns_mov_b32 exec_hi, 0")
    A(f"""
    s_mov_b32 s44, {OPT['spin']}
    {l}:
    buffer_load_dwordx2 {vr(vt,2)}, v{vaddr}, {srd(SWS)}, {soff} offen sc1
    s_waitcnt vmcnt(0)
    v_cmp_ne_u64 vcc, {sNON}, {vr(vt,2)}
    s_sub_u32 s44, s44, 1
    s_cbranch_scc1 {d}
    s_cbranch_vccnz {l}
    {d}:
    s_mov_b64 exec, -1
    """)

def flag_store(soff, vt):
    A(f"""
    v_mov_b32 v{vt}, s42
    v_mov_b32 v{vt+1}, s43
    v_mov_b32 v{vt+2}, 0
    s_mov_b64 exec, 1
    buffer_store_dwordx2 {vr(vt,2)}, v{vt+2}, {srd(SWS)}, {soff} offen sc1
    s_mov_b64 exec, -1
    """)

A(f"""
s_cmp_ge_u32 s2, 256
s_cbranch_scc1 L_END
s_load_dwordx16 s[64:79], s[0:1], 0
s_load_dwordx8 s[80:87], s[0:1], 64
s_load_dwordx2 s[88:89], s[0:1], 96
s_memrealtime s[46:47]
v_lshrrev_b32 v3, 6, v0
v_and_b32 v1, 63, v0
v_readfirstlane_b32 {sWAVE}, v3
v_mov_b32 v2, 0
s_and_b32 {sCG}, s2, 7
s_lshr_b32 {sTB}, s2, 3
s_lshl_b32 {sRB}, {sCG}, 2
s_lshr_b32 s44, s2, 6
s_add_u32 {sRB}, {sRB}, s44
s_and_b32 {sHG}, {sTB}, 7
v_mov_b32 v4, {L_MISC}
v_mov_b32 v5, 0
ds_write_b32 v4, v5
""")
stamp("start")
A("s_waitcnt lgkmcnt(0)\ns_barrier")
if OPT.get("echo"): A("s_mov_b32 s96, s46\ns_mov_b32 s97, 0")
stamp("ptrs")
mksrd(SWS, P_WS, WS_SIZE)
A(f"""
s_cmp_ge_u32 {sWAVE}, 4
s_cbranch_scc1 L_LOADER
""")

mksrd(SK, P_K, 0x200000); mksrd(SV, P_V, 0x200000)
A(f"""
s_or_b32 s44, s2, {sWAVE}
s_cmp_lg_u32 s44, 0
s_cbranch_scc1 L_NONONCE
s_or_b32 s46, s46, 1
v_mov_b32 v8, s46
v_mov_b32 v9, s47
v_mov_b32 v10, 0
s_mov_b64 exec, 1
global_store_dwordx2 v10, v[8:9], {pp(P_DBG)} sc1
s_mov_b64 exec, -1
L_NONONCE:
v_lshrrev_b32 v8, 3, v1
v_and_b32 v9, 7, v1
v_lshlrev_b32 v8, 10, v8
v_lshl_add_u32 v8, v9, 4, v8
s_lshl_b32 s44, {sTB}, 16
s_lshl_b32 s45, {sCG}, 7
s_add_u32 s44, s44, s45
v_add_u32 v8, s44, v8
s_lshl_b32 s45, {sWAVE}, 14
s_lshl_b32 s48, {sWAVE}, 11
s_add_u32 m0, s48, {L_KT + 1024}
s_add_u32 s49, s45, 8192
buffer_load_dwordx4 v8, {srd(SK)}, s45 offen lds
s_add_u32 m0, s48, {L_KT + 2048}
s_nop 0
buffer_load_dwordx4 v8, {srd(SK)}, s49 offen lds
s_add_u32 m0, s48, {L_VT}
s_nop 0
buffer_load_dwordx4 v8, {srd(SV)}, s45 offen lds
s_add_u32 m0, s48, {L_VT + 1024}
s_nop 0
buffer_load_dwordx4 v8, {srd(SV)}, s49 offen lds
s_cmp_lg_u32 {sWAVE}, 0
s_cbranch_scc1 L_NOHALO
v_subrev_u32 v9, 8192, v8
s_mov_b32 m0, {L_KT}
s_nop 0
buffer_load_dwordx4 v9, {srd(SK)}, 0 offen lds
L_NOHALO:
v_and_b32 v10, 15, v1
s_lshl_b32 s44, {sCG}, 6
s_lshl_b32 s45, {sWAVE}, 4
s_add_u32 s50, s44, s45
v_add_u32 v11, s50, v10              ; channel
v_lshlrev_b32 v12, 3, v11
global_load_dwordx2 v[14:15], v12, {pp(P_SK)}
s_lshl_b32 s45, {sTB}, 1
s_add_u32 s51, s44, s45
s_lshr_b32 s45, {sWAVE}, 1
s_add_u32 s51, s51, s45
s_lshl_b32 s45, s51, 12
v_and_b32 v16, 7, v1
v_lshl_add_u32 v16, v16, 2, s45
global_load_dword v17, v16, {pp(P_H)}
s_lshl_b32 s45, s51, 1
v_mov_b32 v16, s45
global_load_ushort v18, v16, {pp(P_D)}
s_lshl_b32 s45, s51, 12
v_and_b32 v16, 31, v1
v_lshl_add_u32 v16, v16, 7, s45
global_load_dword v19, v16, {pp(P_H)}
s_lshl_b32 s45, {sWAVE}, 7
s_add_u32 s52, s45, {L_MISC + 128}
v_and_b32 v16, 31, v1
v_lshl_add_u32 v20, v16, 2, s52
v_mov_b32 v21, 0
ds_write_b32 v20, v21
s_lshr_b32 s45, {sWAVE}, 1
s_mul_i32 s45, s45, {URSTR}
s_and_b32 s48, {sWAVE}, 1
s_lshl_b32 s48, s48, 8
s_add_u32 s45, s45, s48
s_add_u32 s45, s45, {L_UR + 4096}
v_lshl_add_u32 v22, v1, 2, s45
ds_write_b32 v22, v21
s_waitcnt vmcnt(0)
""")
stamp("kvland")
A(f"""
v_and_b32 v16, 7, v1
v_lshl_add_u32 v20, v16, 2, s52
ds_write_b32 v20, v17 offset:32
v_mov_b32 v20, s52
ds_write_b16 v20, v18 offset:96
v_mov_b32 v4, {L_MISC}
v_mov_b32 v5, 1
s_mov_b64 exec, 1
ds_add_u32 v4, v5
s_mov_b64 exec, -1
v_lshrrev_b32 v16, 4, v1
v_and_b32 v20, 1, v16
v_lshlrev_b32 v20, 3, v20
v_add3_u32 v20, v20, v10, 1
v_lshlrev_b32 v20, 1, v20
v_lshrrev_b32 v21, 5, v1
v_lshl_add_u32 v20, v21, 6, v20
v_add_u32 v20, s52, v20
s_waitcnt lgkmcnt(0)
ds_read_b128 v[4:7], v20
v_mov_b32 v22, {L_MISC}
s_mov_b32 s44, {OPT['spin']}
L_KVSYNC:
ds_read_b32 v23, v22
s_waitcnt lgkmcnt(0)
v_readfirstlane_b32 s45, v23
s_sub_u32 s44, s44, 1
s_cbranch_scc1 L_KVSYNCD
s_cmp_lt_u32 s45, 4
s_cbranch_scc1 L_KVSYNC
L_KVSYNCD:
""")
stamp("presync")
A(f"""
v_mov_b32 v102, 0
global_load_dwordx2 v[100:101], v102, {pp(P_DBG)} sc1
v_lshrrev_b32 v20, 2, v1
v_and_b32 v20, 3, v20
v_lshl_add_u32 v20, v16, 3, v20      ; 8*grp + r
v_lshlrev_b32 v20, 7, v20
v_and_b32 v21, 3, v1
v_lshl_add_u32 v20, v21, 3, v20
s_lshl_b32 s45, {sWAVE}, 5
s_add_u32 s45, s45, {L_KT}
v_add_u32 v20, s45, v20
""")
for o in range(2):
    kb, vb = 24 + 10 * o, 30 + 10 * o
    for q in range(3):
        A(f"ds_read_b64_tr_b16 {vr(kb+2*q,2)}, v20 offset:{o*4096 + (4+4*q)*128}")
    for q in range(2):
        A(f"ds_read_b64_tr_b16 {vr(vb+2*q,2)}, v20 offset:{9216 + o*4096 + 4*q*128}")
A(f"""
v_lshlrev_b32 v44, 16, v14
v_and_b32 v45, 0xffff0000, v14
v_lshlrev_b32 v46, 16, v15
v_and_b32 v47, 0xffff0000, v15
v_lshlrev_b32 v12, 12, v11
v_lshlrev_b32 v13, 4, v16
v_sub_u32 v12, v12, v13
v_add_u32 v12, 48, v12
s_lshl_b32 s45, {sTB}, 7
s_sub_u32 s45, {WS_UR + 4080 - 64 - 48}, s45
""")
for o in range(2):
    kb, vb = 24 + 10 * o, 30 + 10 * o
    A(f"s_waitcnt lgkmcnt({5 - 5*o})")
    for e in range(1, 12):
        if e % 2 == 0: A(f"v_lshlrev_b32 v{48+e}, 16, v{kb+e//2}")
        else: A(f"v_and_b32 v{48+e}, 0xffff0000, v{kb+e//2}")
    for e in range(8):
        if e % 2 == 0: A(f"v_lshlrev_b32 v{60+e}, 16, v{vb+e//2}")
        else: A(f"v_and_b32 v{60+e}, 0xffff0000, v{vb+e//2}")
    for t in range(8):
        A(f"v_mul_f32 v{68+t}, v{48+4+t}, v44")
    for j in range(1, 4):
        for t in range(8):
            A(f"v_fmac_f32 v{68+t}, v{48+4+t-j}, v{44+j}")
    for t in range(8):
        A(f"v_mul_f32 v{68+t}, v{68+t}, v{60+t}")
    ob = 76 + 4 * o
    for d in range(4):
        A(f"v_cvt_pk_bf16_f32 v{ob+d}, v{68+7-2*d}, v{68+6-2*d}")
    A(f"buffer_store_dwordx4 {vr(ob,4)}, v12, {srd(SWS)}, s45 offen offset:{64 - 64*o} sc1")
stamp("predone")

VXA, VWA = 8, 12
A(f"""
s_and_b32 s53, {sWAVE}, 1            ; hp
s_lshr_b32 s54, {sWAVE}, 1           ; rt
v_and_b32 v16, 31, v1
v_lshrrev_b32 v17, 5, v1             ; hh
v_lshrrev_b32 v18, 4, v16
v_lshlrev_b32 v18, 13, v18
v_and_b32 v19, 15, v16
v_lshl_add_u32 v18, v19, 7, v18
s_lshl_b32 s45, s54, 14
v_add_u32 v18, s45, v18
v_lshrrev_b32 v19, 1, v19            ; f(r)
v_xor_b32 v19, v19, v17              ; f ^ hh
""")
for s in range(4):
    A(f"v_xor_b32 v20, {2*s}, v19\nv_lshl_add_u32 v{VXA+s}, v20, 4, v18\nv_add_u32 v{104+s}, 0x10000, v{VXA+s}")
A(f"""
v_lshrrev_b32 v20, 2, v1
v_and_b32 v20, 3, v20                ; r
v_lshrrev_b32 v21, 1, v20
v_xor_b32 v21, s53, v21              ; hp ^ (r>>1)
v_lshlrev_b32 v21, 6, v21
v_lshl_add_u32 v21, v20, 7, v21
v_lshrrev_b32 v22, 4, v1
v_and_b32 v22, 1, v22
v_lshl_add_u32 v21, v22, 5, v21
v_and_b32 v22, 3, v1
v_lshl_add_u32 v21, v22, 3, v21
v_mul_u32_u24 v22, 3072, v17
v_add3_u32 v{VWA}, v21, v22, 0
v_add_u32 v{VWA}, 2048, v{VWA}
v_add_u32 v108, 0x10000, v{VWA}
""")
AQ, AK, AV = 16, 32, 48
FX = [64, 68]; FW = [72, 84]
def gemm_reads(c, s):
    sl = SLOT(c); hi = sl >= 65536; off = sl - (65536 if hi else 0)
    xa = (104 if hi else VXA) + s; wa = 108 if hi else VWA
    b = s & 1
    A(f"ds_read_b128 {vr(FX[b],4)}, v{xa} offset:{off}")
    for sec in range(3):
        for half in range(2):
            A(f"ds_read_b64_tr_b16 {vr(FW[b]+4*sec+2*half,2)}, v{wa} offset:{off + s*8192 + sec*1024 + half*512}")
def gemm_mfma(c, s):
    b = s & 1
    first = (c == 0 and s == 0)
    cq = "0" if first else vr(AQ, 16); ck = "0" if first else vr(AK, 16); cv = "0" if first else vr(AV, 16)
    A(f"v_mfma_f32_32x32x16_bf16 {vr(AK,16)}, {vr(FW[b]+4,4)}, {vr(FX[b],4)}, {ck}")
    A(f"v_mfma_f32_32x32x16_bf16 {vr(AV,16)}, {vr(FX[b],4)}, {vr(FW[b]+8,4)}, {cv}")
    A(f"v_mfma_f32_32x32x16_bf16 {vr(AQ,16)}, {vr(FW[b],4)}, {vr(FX[b],4)}, {cq}")
for c in range(8):
    A("s_barrier")
    stamp(f"b{c}")
    gemm_reads(c, 0); gemm_reads(c, 1)
    if c == 1:
        A(f"""
        s_waitcnt vmcnt(0)
        v_readfirstlane_b32 s42, v100
        v_readfirstlane_b32 s43, v101
        s_cmp_lg_u32 s42, 0
        s_cbranch_scc1 L_HAVENON
        """)
        get_nonce(100)
        A(f"""
        L_HAVENON:
        s_lshl_b32 s45, {sCG}, 2
        s_add_u32 s45, s45, {sWAVE}
        s_lshl_b32 s45, s45, 5
        s_add_u32 s45, s45, {sTB}
        s_lshl_b32 s45, s45, 3
        s_add_u32 s45, s45, {F3}
        """)
        flag_store("s45", 100)
    if c == 5:
        A(f"""
        s_and_b32 s45, s51, 63
        s_lshr_b32 s45, s45, 4
        s_lshl_b32 s48, {sCG}, 2
        s_add_u32 s45, s45, s48
        s_lshl_b32 s45, s45, 8
        s_add_u32 s45, s45, {F3}
        v_lshlrev_b32 v102, 3, v1
        """)
        poll(32, "s45", 100, 102)
        A(f"""
        s_lshl_b32 s45, s51, 12
        s_lshl_b32 s48, s53, 11
        s_add_u32 s45, s45, s48
        s_add_u32 s45, s45, {WS_UR}
        s_mul_i32 s49, s54, {URSTR}
        s_add_u32 s49, s49, s48
        s_add_u32 m0, s49, {L_UR}
        v_lshlrev_b32 v102, 4, v1
        buffer_load_dwordx4 v102, {srd(SWS)}, s45 offen sc1 lds
        buffer_load_dwordx4 v102, {srd(SWS)}, s45 offen offset:1024 sc1 lds
        """)
    A("s_waitcnt lgkmcnt(7)"); gemm_mfma(c, 0)
    gemm_reads(c, 2)
    A("s_waitcnt lgkmcnt(7)"); gemm_mfma(c, 1)
    gemm_reads(c, 3)
    A("s_waitcnt lgkmcnt(7)"); gemm_mfma(c, 2)
    A("s_waitcnt lgkmcnt(0)"); gemm_mfma(c, 3)
stamp("gemmend")
A(f"""
s_lshl_b32 s45, {sHG}, 6
s_lshl_b32 s48, {sRB}, 1
s_add_u32 s45, s45, s48
s_add_u32 s45, s45, s54
s_lshl_b32 s45, s45, 13
s_lshl_b32 s48, s53, 11
s_add_u32 s45, s45, s48              ; + hp*2048
s_add_u32 s49, s45, 4096
v_lshlrev_b32 v102, 4, v1
s_lshl_b32 s55, s54, 13
s_sub_u32 s55, {L_KV + 8192}, s55
s_add_u32 s55, s55, s48
v_add_u32 v103, s55, v102
s_lshl_b32 s55, s54, 12
s_add_u32 s55, s55, s48
v_add_u32 v100, s55, v102
s_mov_b32 s55, {f32(0.25 * LOG2E)}
""")
for i in range(8): A(f"v_cvt_pk_bf16_f32 v{64+i}, v{AK+2*i}, v{AK+2*i+1}")
A(f"buffer_store_dwordx4 v[64:67], v102, {srd(SWS)}, s45 offen sc1")
A(f"buffer_store_dwordx4 v[68:71], v102, {srd(SWS)}, s45 offen offset:1024 sc1")
for i in range(8): A(f"v_cvt_pk_bf16_f32 v{72+i}, v{AV+2*i}, v{AV+2*i+1}")
A(f"buffer_store_dwordx4 v[72:75], v102, {srd(SWS)}, s49 offen sc1")
A(f"buffer_store_dwordx4 v[76:79], v102, {srd(SWS)}, s49 offen offset:1024 sc1")
A("ds_write_b128 v103, v[64:67]\nds_write_b128 v103, v[68:71] offset:1024")
A("ds_write_b128 v103, v[72:75] offset:4096\nds_write_b128 v103, v[76:79] offset:5120")
for i in range(16): A(f"v_mul_f32 v{AQ+i}, s55, v{AQ+i}")
for i in range(8): A(f"v_cvt_pk_bf16_f32 v{80+i}, v{AQ+2*i}, v{AQ+2*i+1}")
A("ds_write_b128 v100, v[80:83]\nds_write_b128 v100, v[84:87] offset:1024")
A(f"""
v_and_b32 v16, 15, v1
v_lshrrev_b32 v17, 4, v1             ; g
v_add_u32 v18, 1, v16                ; beta
v_and_b32 v19, 3, v18
v_mul_u32_u24 v19, {HSTR}, v19
v_and_b32 v18, 28, v18
v_lshl_add_u32 v18, v17, 3, v18
v_lshl_add_u32 v8, v18, 1, v19
s_mul_i32 s45, s54, {4*HSTR}
s_lshl_b32 s48, s53, 8
s_add_u32 s45, s45, s48
s_add_u32 s45, s45, {L_H}
v_add_u32 v8, s45, v8                ; A addr
v_lshlrev_b32 v18, 5, v16
v_lshlrev_b32 v19, 4, v17
v_sub_u32 v9, v19, v18               ; 16g - 32a
s_mul_i32 s45, s54, {URSTR}
s_add_u32 s49, s45, s48
s_add_u32 s49, s49, {L_UR + 512}
v_add_u32 v9, s49, v9                ; G addr
v_and_b32 v19, 16, v19               ; 16*(g&1)
v_sub_u32 v10, v19, v18
s_lshl_b32 s48, s53, 11
s_sub_u32 s45, s45, s48
s_add_u32 s45, s45, {L_UR + 4064 - 1536}
v_add_u32 v10, s45, v10
s_waitcnt vmcnt(4) lgkmcnt(0)
s_barrier
""")
stamp("ba")
CA = [64, 128]; CG = [96, 160]; ACC = 16
def conv_reads(s):
    b = s & 1
    out = []
    for i in range(8):
        out.append(f"ds_read_b128 {vr(CG[b]+4*i,4)}, v9 offset:{512*(7-i) + 64*s}")
        out.append(f"ds_read_b64 {vr(CA[b]+4*i,2)}, v8 offset:{512*i + 64*s}")
        out.append(f"ds_read_b64 {vr(CA[b]+4*i+2,2)}, v8 offset:{512*i + 64*s + 8}")
    return out
def conv_mfmas(s):
    b = s & 1
    out = []
    seen = set()
    pairs = sorted([(i, d) for i in range(8) for d in range(8) if i + d <= 7], key=lambda p: (max(p), p[0] + p[1]))
    for i, d in pairs:
        j = i + d
        c = "0" if (s == 0 and j not in seen) else vr(ACC + 4*j, 4)
        seen.add(j)
        out.append((max(i, d), f"v_mfma_f32_16x16x32_bf16 {vr(ACC+4*j,4)}, {vr(CA[b]+4*i,4)}, {vr(CG[b]+4*d,4)}, {c}"))
    return out
for r in conv_reads(0): A(r)
for jj in range(4): A(f"ds_read_b128 {vr(48+4*jj,4)}, v10 offset:{512*(3-jj)}")
A("s_waitcnt lgkmcnt(0)")
for s in range(4):
    nxt = conv_reads(s + 1) if s < 3 else []
    mm = conv_mfmas(s)
    for n, (lvl, m) in enumerate(mm):
        A(m)
        if n < len(nxt): A(nxt[n])
    if s == 1:
        A(f"""
        s_waitcnt vmcnt(0)
        s_lshl_b32 s45, {sHG}, 5
        s_add_u32 s45, s45, {sRB}
        s_lshl_b32 s45, s45, 2
        s_add_u32 s45, s45, {sWAVE}
        s_lshl_b32 s45, s45, 3
        s_add_u32 s45, s45, {F1}
        """)
        flag_store("s45", 12)
    A("s_waitcnt lgkmcnt(0)")
A(f"""
s_lshl_b32 s45, {sWAVE}, 12
s_add_u32 s45, s45, {L_SCR}
v_lshl_add_u32 v11, v1, 4, s45
""")
assert True
A(f"""
s_xor_b32 s48, {sWAVE}, 1
s_lshl_b32 s48, s48, 12
s_add_u32 s48, s48, {L_SCR}
v_lshl_add_u32 v12, v1, 4, s48
s_cmp_eq_u32 s53, 0
s_cbranch_scc0 L_KH1
""")
for jj in range(4): A(f"v_mfma_f32_16x16x32_bf16 {vr(ACC+4*jj,4)}, v[4:7], {vr(48+4*jj,4)}, {vr(ACC+4*jj,4)}")
for jj in range(4): A(f"ds_write_b128 v11, {vr(ACC+16+4*jj,4)} offset:{1024*jj}")
A("s_branch L_KHD\nL_KH1:")
for jj in range(4): A(f"ds_write_b128 v11, {vr(ACC+4*jj,4)} offset:{1024*jj}")
A("s_waitcnt lgkmcnt(0)")
for jj in range(4): A(f"v_mfma_f32_16x16x32_bf16 {vr(ACC+4*jj,4)}, v[4:7], {vr(48+4*jj,4)}, {vr(ACC+16+4*jj,4)}")
A("L_KHD:")
stamp("convend")
A("s_waitcnt lgkmcnt(0)\ns_barrier")
stamp("bb")
for jj in range(4): A(f"ds_read_b128 {vr(48+4*jj,4)}, v12 offset:{1024*jj}")
A(f"""
v_and_b32 v13, 15, v1
v_lshlrev_b32 v13, 5, v13
v_lshrrev_b32 v14, 4, v1
v_lshl_add_u32 v13, v14, 3, v13
s_lshl_b32 s45, s51, 12
s_lshl_b32 s48, s53, 11
s_add_u32 s45, s45, s48
s_add_u32 s45, s45, {WS_Y}
s_waitcnt lgkmcnt(0)
""")
for i in range(16): A(f"v_add_f32 v{ACC+i}, v{ACC+i}, v{48+i}")
for jj in range(4):
    A(f"v_cvt_pk_bf16_f32 v{64+2*jj}, v{ACC+4*jj}, v{ACC+4*jj+1}\nv_cvt_pk_bf16_f32 v{65+2*jj}, v{ACC+4*jj+2}, v{ACC+4*jj+3}")
    A(f"buffer_store_dwordx2 {vr(64+2*jj,2)}, v13, {srd(SWS)}, s45 offen offset:{512*jj} sc1")
A("s_branch L_ATT")

A("L_LOADER:")
mksrd(SX, P_X, 0x200000); mksrd(SW, P_W, 0x180000)
A(f"""
s_sub_u32 s56, {sWAVE}, 4            ; lw
v_lshrrev_b32 v8, 3, v1
v_and_b32 v9, 7, v1
v_lshrrev_b32 v10, 4, v1
v_xor_b32 v11, v9, v10               ; jj = (l&7) ^ (l>>4)
v_lshlrev_b32 v12, 10, v8
v_lshl_add_u32 v4, v11, 4, v12       ; x voffset i=0
v_xor_b32 v5, 64, v4                 ; i=1 (chunk ^4)
v_and_b32 v10, 1, v10
v_lshlrev_b32 v10, 2, v10
v_xor_b32 v10, v9, v10
v_mul_u32_u24 v6, 3072, v8
v_lshl_add_u32 v6, v10, 4, v6        ; W voffset
v_lshlrev_b32 v13, 4, v11
s_lshl_b32 s57, {sRB}, 16
s_lshl_b32 s45, s56, 14
s_add_u32 s57, s57, s45              ; x base
s_mul_i32 s58, s56, 49152
s_lshl_b32 s45, {sHG}, 7
s_add_u32 s58, s58, s45              ; W base
s_lshl_b32 s59, s56, 13
""")
if OPT["rot"] == 0: A("s_mov_b32 s60, 0")
elif OPT["rot"] == 1: A(f"s_lshl_b32 s60, {sRB}, 1\ns_add_u32 s60, s60, {sHG}\ns_and_b32 s60, s60, 7")
elif OPT["rot"] == 2: A(f"s_and_b32 s60, {sCG}, 7")
def issue_chunk(c):
    sl = SLOT(c)
    A(f"""
    s_lshl_b32 s45, s60, 7
    s_add_u32 s45, s45, s57
    s_mul_i32 s48, s60, 196608
    s_add_u32 s48, s48, s58
    s_add_u32 m0, s59, {sl}
    s_add_u32 s49, s45, 8192
    buffer_load_dwordx4 v4, {srd(SX)}, s45 offen lds
    s_add_u32 m0, s59, {sl+1024}
    s_add_u32 s50, s48, 24576
    buffer_load_dwordx4 v5, {srd(SX)}, s49 offen lds
    s_add_u32 m0, s59, {sl+2048}
    s_add_u32 s60, s60, 1
    buffer_load_dwordx4 v6, {srd(SW)}, s48 offen lds
    buffer_load_dwordx4 v6, {srd(SW)}, s48 offen offset:1024 lds
    buffer_load_dwordx4 v6, {srd(SW)}, s48 offen offset:2048 lds
    s_add_u32 m0, s59, {sl+5120}
    s_and_b32 s60, s60, 7
    buffer_load_dwordx4 v6, {srd(SW)}, s50 offen lds
    buffer_load_dwordx4 v6, {srd(SW)}, s50 offen offset:1024 lds
    buffer_load_dwordx4 v6, {srd(SW)}, s50 offen offset:2048 lds
    """)
issue_chunk(0)
A("s_sub_u32 s61, s60, 1")
for c in range(8):
    A(f"s_and_b32 s61, s61, 7\ns_lshl_b32 s45, s61, 7\nv_add_u32 v14, s45, v13\nglobal_load_dwordx4 {vr(32+4*c,4)}, v14, {pp(P_GW)}\ns_add_u32 s61, s61, 1")
for c in range(1, 4): issue_chunk(c)
A(f"""
v_lshl_add_u32 v14, v1, 4, s59
v_xor_b32 v15, 64, v14
v_add_u32 v24, 0x10000, v14
v_add_u32 v25, 0x10000, v15
v_mov_b32 v26, 0
v_mov_b32 v27, 0
""")
mksrd(SH, P_H, 0)
for c in range(8):
    n = 24 if c == 0 else (16 if c <= 6 else 8)
    A(f"s_waitcnt vmcnt({n})\ns_barrier")
    stamp(f"b{c}")
    sl = SLOT(c); hi = sl >= 65536; off = sl - (65536 if hi else 0)
    A(f"ds_read_b128 v[16:19], v{24 if hi else 14} offset:{off}\nds_read_b128 v[20:23], v{25 if hi else 15} offset:{off+1024}")
    if 1 <= c <= 4: issue_chunk(c + 3)
    if c == 5:
        A(f"""
        s_lshl_b32 s45, {sCG}, 6
        s_lshl_b32 s48, {sTB}, 1
        s_add_u32 s51, s45, s48          ; c0
        s_lshl_b32 s45, s51, 12
        s_add_u32 s26, s45, 4096
        s_lshl_b32 s48, s56, 1
        s_add_u32 s45, s45, s48
        v_lshlrev_b32 v28, 4, v1
        v_add_u32 v28, s45, v28
        s_mul_i32 s49, s56, {HSTR}
        s_add_u32 m0, s49, {L_H}
        v_add_u32 v29, 4096, v28
        """)
        for i in range(4): A(f"buffer_load_dwordx4 v28, {srd(SH)}, 0 offen offset:{1024*i} lds")
        A(f"s_add_u32 s26, s26, 4096\ns_add_u32 m0, s49, {L_H + 4*HSTR}\ns_nop 0")
        for i in range(4): A(f"buffer_load_dwordx4 v29, {srd(SH)}, 0 offen offset:{1024*i} lds")
        A(f"""
        v_and_b32 v30, 15, v1
        v_lshlrev_b32 v30, 2, v30
        v_lshrrev_b32 v31, 4, v1
        v_and_b32 v31, 1, v31
        v_mul_u32_u24 v31, {4*HSTR}, v31
        s_add_u32 s49, s49, {L_H + 4096}
        v_add3_u32 v30, v30, v31, s49
        v_mov_b32 v31, 0
        ds_write_b32 v30, v31
        """)
    A("s_waitcnt lgkmcnt(0)")
    for i in range(4):
        A(f"v_dot2_f32_bf16 v26, v{16+i}, v{32+4*c+i}, v26\nv_dot2_f32_bf16 v27, v{20+i}, v{32+4*c+i}, v27")
get_nonce(16)
for r in (26, 27):
    A(f"v_add_f32_dpp v{r}, v{r}, v{r} quad_perm:[1,0,3,2] row_mask:0xf bank_mask:0xf")
for r in (26, 27):
    A(f"v_add_f32_dpp v{r}, v{r}, v{r} quad_perm:[2,3,0,1] row_mask:0xf bank_mask:0xf")
for r in (26, 27):
    A(f"v_add_f32_dpp v{r}, v{r}, v{r} row_half_mirror row_mask:0xf bank_mask:0xf")
A(f"s_mov_b32 s45, {f32(-LOG2E)}")
for r in (26, 27): A(f"v_mul_f32 v{r}, s45, v{r}")
for r in (26, 27): A(f"v_exp_f32 v{r}, v{r}")
for r in (26, 27): A(f"v_add_f32 v{r}, 1.0, v{r}")
for r in (26, 27): A(f"v_rcp_f32 v{r}, v{r}")
A(f"""
s_lshl_b32 s45, s56, 6
s_add_u32 s45, s45, {L_G}
v_lshl_add_u32 v28, v8, 2, s45
s_waitcnt vmcnt(0)
s_barrier
""")
stamp("ba")
A(f"""
ds_write_b32 v28, v26
ds_write_b32 v28, v27 offset:32
s_add_u32 s45, s56, 1
s_cmp_lt_u32 {sRB}, s45
s_cbranch_scc1 L_NOHALO2
s_sub_u32 s62, {sRB}, s45
s_lshl_b32 s45, {sHG}, 5
s_add_u32 s45, s45, s62
s_lshl_b32 s63, s45, 14
s_lshl_b32 s45, s45, 5
s_add_u32 s45, s45, {F1}
v_lshlrev_b32 v18, 3, v1
""")
poll(4, "s45", 16, 18)
stamp("f1seen")
A(f"""
v_lshlrev_b32 v18, 4, v1
s_lshl_b32 s48, s56, 14
""")
for t in (1, 0):
    for hf in range(2):
        A(f"s_add_u32 m0, s48, {L_KV + (3 - t)*8192 + hf*4096}\ns_add_u32 s45, s63, {t*8192 + hf*4096}")
        for i in range(4): A(f"buffer_load_dwordx4 v18, {srd(SWS)}, s45 offen offset:{1024*i} sc1 lds")
A("L_NOHALO2:\ns_waitcnt lgkmcnt(0)\ns_barrier")
stamp("bb")

A("L_ATT:")
mksrd(SWO, P_WO, 0x80000)
MD, MF = 16, 32
S = [48, 64]; P = 80; O = 88; KF = [104, 108]; VF = [112, 120]; QF = 4
A(f"""
s_and_b32 s53, {sWAVE}, 3
s_lshr_b32 s54, {sWAVE}, 2           ; qt
s_lshl_b32 s55, {sRB}, 1
s_add_u32 s55, s55, s54
s_add_u32 s55, s55, 1
s_min_u32 s55, s55, 9                ; ntiles
v_lshlrev_b32 v8, 4, v1
s_lshl_b32 s45, {sWAVE}, 10
v_add_u32 v9, s45, v8                ; Q addr
s_lshl_b32 s45, s54, 13
s_sub_u32 s45, {L_KV + 8192}, s45
s_lshl_b32 s48, s53, 10
s_add_u32 s48, s48, s45
v_add_u32 v10, s48, v8
s_lshr_b32 s48, s53, 1
s_lshl_b32 s48, s48, 11
s_add_u32 s48, s48, s45
s_and_b32 s49, s53, 1
s_lshl_b32 s49, s49, 8
s_add_u32 s48, s48, s49
s_add_u32 s48, s48, 4096
v_add_u32 v11, s48, v8               ; V addr
v_add_u32 v12, 0x8000, v10
v_add_u32 v13, 0x8000, v11
s_mov_b32 s60, 0x0000ffff
s_mov_b32 s61, 0x0000ffff
; masks
v_and_b32 v14, 31, v1
v_lshrrev_b32 v15, 5, v1
v_lshlrev_b32 v15, 2, v15
v_sub_u32 v14, v14, v15              ; n - 4hh
v_mov_b32 v15, 0xff800000
""")
for r in range(16):
    m = 8 * (r >> 2) + (r & 3)
    A(f"v_cmp_le_i32 vcc, {m}, v14\nv_cndmask_b32 v{MD+r}, v15, 0, vcc".replace("v15, 0, vcc", f"v15, v3, vcc"))
    A(f"v_cndmask_b32 v{MF+r}, v3, v15, vcc")
A.lines.insert(len(A.lines) - 48, "v_mov_b32 v3, 0")
for b in VF:
    for i in range(8): A(f"v_mov_b32 v{b+i}, 0x3f803f80")
A(f"""
v_lshrrev_b32 v14, 3, v1
v_and_b32 v15, 7, v1
v_lshrrev_b32 v128, 2, v1
v_and_b32 v128, 4, v128
v_xor_b32 v15, v15, v128
v_lshlrev_b32 v14, 10, v14
v_lshl_add_u32 v14, v15, 4, v14
s_lshl_b32 s62, {sWAVE}, 16
s_lshl_b32 s45, {sHG}, 7
s_add_u32 s62, s62, s45
s_lshl_b32 s63, {sWAVE}, 13
s_add_u32 s63, s63, {L_WO}
s_waitcnt vmcnt(0)
s_barrier
""")
stamp("bc")
A(f"""
s_cmp_lg_u32 {sWAVE}, 4
s_cbranch_scc1 L_NOF4
s_lshl_b32 s45, {sCG}, 5
s_add_u32 s45, s45, {sTB}
s_lshl_b32 s45, s45, 3
s_add_u32 s45, s45, {F4}
""")
flag_store("s45", 128)
A("L_NOF4:")
for i in range(8):
    A(f"s_add_u32 m0, s63, {1024*i}\ns_add_u32 s45, s62, {8192*i}\nbuffer_load_dwordx4 v14, {srd(SWO)}, s45 offen lds")
def rdK(j, dst):
    a, o = (10, j * 8192) if j < 4 else (12, (j - 4) * 8192)
    A(f"ds_read_b128 {vr(dst,4)}, v{a} offset:{o}")
def rdV(j, dst):
    a, o = (11, j * 8192) if j < 4 else (13, (j - 4) * 8192)
    A(f"s_mov_b64 exec, s[60:61]\nds_read_b128 {vr(dst,4)}, v{a} offset:{o}\nds_read_b128 {vr(dst+4,4)}, v{a} offset:{o+1024}\ns_mov_b64 exec, -1")
def cmask(j): return vr(MD, 16) if j == 0 else (vr(MF, 16) if j == 8 else "0")
A(f"ds_read_b128 {vr(QF,4)}, v9")
if OPT["force_slow"]: A("s_branch L_SLOW")
rdK(0, KF[0]); rdK(1, KF[1]); rdV(0, VF[0])
A("s_waitcnt lgkmcnt(3)")
A(f"v_mfma_f32_32x32x16_bf16 {vr(S[0],16)}, {vr(KF[0],4)}, {vr(QF,4)}, {cmask(0)}")
for j in range(9):
    sb = S[j & 1]; vb = VF[j & 1]
    if j < 8:
        A("s_waitcnt lgkmcnt(2)")
        A(f"v_mfma_f32_32x32x16_bf16 {vr(S[(j+1)&1],16)}, {vr(KF[(j+1)&1],4)}, {vr(QF,4)}, {cmask(j+1)}")
    if j < 7: rdK(j + 2, KF[j & 1])
    if j < 8: rdV(j + 1, VF[(j + 1) & 1])
    for i in range(8): A(f"v_exp_f32 v{sb+i}, v{sb+i}")
    for i in range(4): A(f"v_cvt_pk_bf16_f32 v{P+i}, v{sb+2*i}, v{sb+2*i+1}")
    for i in range(8, 10): A(f"v_exp_f32 v{sb+i}, v{sb+i}")
    A(f"s_waitcnt lgkmcnt({3 if j < 7 else (2 if j < 8 else 0)})")
    A(f"v_mfma_f32_32x32x16_bf16 {vr(O,16)}, {vr(vb,4)}, {vr(P,4)}, {'0' if j == 0 else vr(O,16)}")
    for i in range(10, 16): A(f"v_exp_f32 v{sb+i}, v{sb+i}")
    for i in range(4, 8): A(f"v_cvt_pk_bf16_f32 v{P+i}, v{sb+2*i}, v{sb+2*i+1}")
    if j < 8: A(f"s_cmp_eq_u32 s55, {j+1}")
    A(f"v_mfma_f32_32x32x16_bf16 {vr(O,16)}, {vr(vb+4,4)}, {vr(P+4,4)}, {vr(O,16)}")
    if j < 8: A("s_cbranch_scc1 L_ATTFIN")
A(f"""
L_ATTFIN:
s_waitcnt lgkmcnt(0)
s_mov_b32 s45, {f32(2.0**-30)}
s_mov_b32 s48, {f32(2.0**30)}
v_cmp_ngt_f32 vcc, v{O+8}, s45
""".replace(f"v_cmp_ngt_f32 vcc, v{O+8}, s45", f"v_cmp_nlt_f32 vcc, s45, v{O+8}"))
A(f"""
v_cmp_ngt_f32 s[50:51], s48, v{O+8}
s_or_b64 vcc, vcc, s[50:51]
s_cbranch_vccnz L_SLOW
L_ATTNORM:
v_rcp_f32 v{O+8}, v{O+8}
s_lshl_b32 s45, {sRB}, 1
s_add_u32 s45, s45, s54
s_lshl_b32 s45, s45, 5
s_lshl_b32 s48, {sHG}, 2
s_add_u32 s45, s45, s48
s_add_u32 s45, s45, s53
s_lshl_b32 s45, s45, 10
s_add_u32 s45, s45, {WS_O}
""")
for i in range(8): A(f"v_mul_f32 v{O+i}, v{O+i}, v{O+8}")
for i in range(4): A(f"v_cvt_pk_bf16_f32 v{P+i}, v{O+2*i}, v{O+2*i+1}")
A(f"buffer_store_dwordx4 {vr(P,4)}, v8, {srd(SWS)}, s45 offen sc1")
stamp("attend")
A("s_waitcnt vmcnt(0)\ns_barrier")
stamp("bd")

A(f"""
s_cmp_ge_u32 {sWAVE}, 4
s_cbranch_scc1 L_FHELP
""")
mksrd(SX, P_X, 0x200000)
A(f"""
s_and_b32 s53, {sWAVE}, 1            ; ct
s_lshr_b32 s54, {sWAVE}, 1           ; rt
v_and_b32 v10, 31, v1
v_lshrrev_b32 v11, 5, v1
v_lshlrev_b32 v12, 10, v10
v_lshl_add_u32 v12, v11, 5, v12
s_lshl_b32 s45, {sRB}, 16
s_lshl_b32 s48, s54, 15
s_add_u32 s45, s45, s48
s_lshl_b32 s48, {sHG}, 7
s_add_u32 s45, s45, s48
s_lshl_b32 s48, s53, 6
s_add_u32 s56, s45, s48
buffer_load_dwordx4 v[16:19], v12, {srd(SX)}, s56 offen
buffer_load_dwordx4 v[20:23], v12, {srd(SX)}, s56 offen offset:16
; gate
s_lshl_b32 s45, s54, 7
s_add_u32 s45, s45, {L_G}
v_lshl_add_u32 v13, v10, 2, s45
ds_read_b32 v9, v13
v_lshrrev_b32 v13, 2, v1
v_and_b32 v13, 3, v13                ; r
v_lshrrev_b32 v14, 1, v13
v_xor_b32 v14, s53, v14
v_lshlrev_b32 v14, 6, v14
v_lshl_add_u32 v15, v11, 2, v13
v_lshl_add_u32 v14, v15, 7, v14
v_and_b32 v15, 1, v1
v_lshl_add_u32 v14, v15, 5, v14
v_lshrrev_b32 v15, 4, v1
v_and_b32 v15, 1, v15
v_lshl_add_u32 v14, v15, 4, v14
v_lshrrev_b32 v24, 1, v1
v_and_b32 v24, 1, v24
v_lshl_add_u32 v14, v24, 3, v14
v_add_u32 v14, {L_WO}, v14
v_lshl_add_u32 v24, v11, 4, v13
v_lshlrev_b32 v24, 7, v24
v_lshl_add_u32 v24, v15, 5, v24
v_and_b32 v25, 3, v1
v_lshl_add_u32 v24, v25, 3, v24
s_lshl_b32 s45, s53, 12
s_lshl_b32 s48, s54, 6
s_add_u32 s45, s45, s48
s_add_u32 s45, s45, {L_Y}
v_add_u32 v24, s45, v24
""")
for k in range(32):
    A(f"ds_read_b64_tr_b16 {vr(128+4*k,2)}, v14 offset:{k*2048}\nds_read_b64_tr_b16 {vr(130+4*k,2)}, v14 offset:{k*2048+1024}")
A("s_branch L_FBE\nL_FHELP:")
A(f"""
s_cmp_eq_u32 {sWAVE}, 4
s_cbranch_scc1 L_FW4
s_cmp_eq_u32 {sWAVE}, 5
s_cbranch_scc0 L_FBE
s_lshl_b32 s45, {sHG}, 8
s_add_u32 s45, s45, {F4}
v_lshlrev_b32 v18, 3, v1
""")
poll(32, "s45", 16, 18)
A(f"""
v_lshrrev_b32 v18, 3, v1
v_lshlrev_b32 v18, 12, v18
v_and_b32 v19, 7, v1
v_lshl_add_u32 v18, v19, 4, v18
s_lshl_b32 s48, {sHG}, 18
s_lshl_b32 s45, {sRB}, 7
s_add_u32 s48, s48, s45
s_add_u32 s48, s48, {WS_Y}
""")
for i in range(8):
    A(f"s_mov_b32 m0, {L_Y + 1024*i}\ns_add_u32 s45, s48, {32768*i}\nbuffer_load_dwordx4 v18, {srd(SWS)}, s45 offen sc1 lds")
A(f"""
s_waitcnt vmcnt(0)
s_branch L_FBE
L_FW4:
s_lshl_b32 s48, {sRB}, 7
s_add_u32 s48, s48, {F2}
s_lshl_b32 s45, {sHG}, 3
s_add_u32 s45, s45, s48
""")
flag_store("s45", 16)
A("v_lshlrev_b32 v18, 3, v1")
poll(8, "s48", 16, 18)
A(f"""
L_FBE:
s_barrier
""")
stamp("be")
A(f"""
s_lshl_b32 s45, {sRB}, 16
s_lshl_b32 s48, {sWAVE}, 13
s_add_u32 s45, s45, s48
s_add_u32 s45, s45, {WS_O}
s_add_u32 s49, s45, 4096
s_add_u32 m0, s48, {L_O}
s_nop 0
""")
for i in range(4): A(f"buffer_load_dwordx4 v8, {srd(SWS)}, s45 offen offset:{1024*i} sc1 lds")
A(f"s_add_u32 m0, s48, {L_O + 4096}\ns_nop 0")
for i in range(4): A(f"buffer_load_dwordx4 v8, {srd(SWS)}, s49 offen offset:{1024*i} sc1 lds")
A(f"""
s_cmp_ge_u32 {sWAVE}, 4
s_cbranch_scc1 L_FH2
""")
mksrd(SOUT, P_OUT, 0x200000)
for q in range(4): A(f"ds_read_b64_tr_b16 {vr(32+2*q,2)}, v24 offset:{512*q}")
A(f"""
s_lshl_b32 s45, s54, 15
s_add_u32 s45, s45, {L_O}
v_add_u32 v25, s45, v8
s_waitcnt vmcnt(8) lgkmcnt(0)
v_sub_f32 v26, 1.0, v9
""")
BT = 48
for e in range(16):
    if e % 2 == 0:
        A(f"v_lshlrev_b32 v{BT+e}, 16, v{16+e//2}\nv_lshlrev_b32 v27, 16, v{32+e//2}")
    else:
        A(f"v_and_b32 v{BT+e}, 0xffff0000, v{16+e//2}\nv_and_b32 v27, 0xffff0000, v{32+e//2}")
    A(f"v_mul_f32 v{BT+e}, v{BT+e}, v27\nv_mul_f32 v{BT+e}, v{BT+e}, v26")
A("s_waitcnt vmcnt(0)\ns_barrier")
stamp("bf")
OA = 64; OF = 80
NB = 8
for k in range(NB): A(f"ds_read_b128 {vr(OF+4*k,4)}, v25 offset:{1024*k}")
for k in range(32):
    rem = min(NB - 1, 31 - k)
    A(f"s_waitcnt lgkmcnt({rem})")
    A(f"v_mfma_f32_32x32x16_bf16 {vr(OA,16)}, {vr(128+4*k,4)}, {vr(OF+4*(k%NB),4)}, {'0' if k == 0 else vr(OA,16)}")
    if k + NB < 32: A(f"ds_read_b128 {vr(OF+4*(k%NB),4)}, v25 offset:{1024*(k+NB)}")
stamp("mmend")
for e in range(16): A(f"v_fmac_f32 v{BT+e}, v9, v{OA+e}")
for i in range(8): A(f"v_cvt_pk_bf16_f32 v{16+i}, v{BT+2*i}, v{BT+2*i+1}")
A(f"buffer_store_dwordx4 v[16:19], v12, {srd(SOUT)}, s56 offen\nbuffer_store_dwordx4 v[20:23], v12, {srd(SOUT)}, s56 offen offset:16")
A("s_branch L_FIN\nL_FH2:\ns_waitcnt vmcnt(0)\ns_barrier\nL_FIN:")
if OPT.get("echo"):
    A("s_waitcnt vmcnt(0)")
    if not OPT["stamps"]: stamp("end")
    A("""
    s_memrealtime s[98:99]
    s_waitcnt lgkmcnt(0)
    s_add_u32 s97, s97, s98
    L_ECHO:
    s_memrealtime s[98:99]
    s_waitcnt lgkmcnt(0)
    s_sub_u32 s45, s98, s97
    s_cmp_lt_i32 s45, 0
    s_cbranch_scc1 L_ECHO
    """)
if OPT["stamps"]:
    A("s_waitcnt vmcnt(0)")
    stamp("end")
    A(f"""
    s_memrealtime s[98:99]
    s_waitcnt lgkmcnt(0)
    v_writelane_b32 v2, s98, 63
    v_writelane_b32 v2, s46, 62
    s_lshl_b32 s45, s2, 3
    s_add_u32 s45, s45, {sWAVE}
    s_lshl_b32 s45, s45, 8
    s_add_u32 s45, s45, {WS_ST}
    v_lshlrev_b32 v3, 2, v1
    buffer_store_dword v2, v3, {srd(SWS)}, s45 offen
    """)
A("L_END:\ns_endpgm")

A("L_SLOW:\ns_waitcnt lgkmcnt(0)\nv_mov_b32 v129, 0xff800000")
for j in range(9):
    rdK(j, KF[0])
    A("s_waitcnt lgkmcnt(0)")
    A(f"v_mfma_f32_32x32x16_bf16 {vr(S[0],16)}, {vr(KF[0],4)}, {vr(QF,4)}, {cmask(j)}")
    for i in range(0, 16, 2): A(f"v_max3_f32 v129, v{S[0]+i}, v{S[0]+i+1}, v129")
    if j < 8: A(f"s_cmp_eq_u32 s55, {j+1}\ns_cbranch_scc1 L_SLOW2")
A("L_SLOW2:\nv_mov_b32 v130, v129\nv_permlane32_swap_b32 v129, v130\nv_max_f32 v129, v129, v130")
for j in range(9):
    rdK(j, KF[0]); rdV(j, VF[0])
    A("s_waitcnt lgkmcnt(0)")
    A(f"v_mfma_f32_32x32x16_bf16 {vr(S[0],16)}, {vr(KF[0],4)}, {vr(QF,4)}, {cmask(j)}")
    for i in range(16): A(f"v_sub_f32 v{S[0]+i}, v{S[0]+i}, v129")
    for i in range(16): A(f"v_exp_f32 v{S[0]+i}, v{S[0]+i}")
    for i in range(8): A(f"v_cvt_pk_bf16_f32 v{P+i}, v{S[0]+2*i}, v{S[0]+2*i+1}")
    A(f"v_mfma_f32_32x32x16_bf16 {vr(O,16)}, {vr(VF[0],4)}, {vr(P,4)}, {'0' if j == 0 else vr(O,16)}")
    A(f"v_mfma_f32_32x32x16_bf16 {vr(O,16)}, {vr(VF[0]+4,4)}, {vr(P+4,4)}, {vr(O,16)}")
    if j < 8: A(f"s_cmp_eq_u32 s55, {j+1}\ns_cbranch_scc1 L_ATTNORM")
A("s_branch L_ATTNORM")

n = A.fix(verbose=bool(OPT.get("verbose", 0)))
label = NAME + "_kernel"
hdr = open("cdna_kernels/" + NAME + ".s.ref").read().split("; Override launch")[0]
out = hdr + f"""; @launch grid=(256,1,1) block=(512,1,1) lds=163840
.amdgcn_target "amdgcn-amd-amdhsa--gfx950"
.text
.globl {label}
.p2align 8
.type {label},@function
{label}:
{A.text()}
.section .rodata,"a"
.p2align 6
.amdhsa_kernel {label}
  .amdhsa_next_free_vgpr 256
  .amdhsa_next_free_sgpr 102
  .amdhsa_accum_offset 256
  .amdhsa_group_segment_fixed_size 0
  .amdhsa_kernarg_size 104
  .amdhsa_user_sgpr_count 2
  .amdhsa_user_sgpr_kernarg_segment_ptr 1
  .amdhsa_system_sgpr_workgroup_id_x 1
.end_amdhsa_kernel
"""
open(sys.argv[1], "w").write(out)
print(f"wrote {sys.argv[1]}: {len(A.lines)} lines, {n} nops inserted; stamps {STN}")
```

```python
import sys, math, struct
sys.path.insert(0, "gen")
from asmx import Asm

NAME = "gated_mix__sliding_block__ssm_conv_h3__prompt"
OPT = dict(stamps=0, rot=0, force_slow=0, spin=1 << 20, pf=7, kvb=1, f3c=4, npre=3, nf=9, prio=1, local=1, f4j=3)
for a in sys.argv[2:]:
    k, v = a.split("="); OPT[k] = v if k == "echo" else int(v, 0)

WS_KV, WS_O, WS_UR, WS_Y, WS_F, WS_ST, WS_SIZE = 0, 0x400000, 0x600000, 0x800000, 0xA00000, 0xB00000, 0xC00000
F3 = WS_F
F1 = WS_F + 0x2000
F4 = WS_F + 0x4000
FH = WS_F + 0x6000
F2 = WS_F + 0x8000
SLOT = lambda c: (c % 4) * 24576
L_H = 98304; HSTR = 4160
L_UR = 131584; URSTR = 4608
L_MISC = 140800
L_G = L_MISC + 512
L_KT = 146432
L_VT = L_KT + 9216
L_SCR = L_KT
L_Q = 0; L_KV = 8192
L_WO = 98304; L_O = 0; L_Y = 90112
LOG2E = math.log2(math.e)
def f32(x): return "0x%08x" % struct.unpack("<I", struct.pack("<f", x))[0]

SX, SW, SWO, SK, SV, SH, SWS, SOUT = 4, 8, 12, 16, 20, 24, 28, 32
srd = lambda b: f"s[{b}:{b+3}]"
sWAVE, sRB, sHG, sCG, sTB, sLOC = "s36", "s37", "s38", "s39", "s40", "s41"
sNON = "s[42:43]"
P_X, P_W, P_WO, P_K, P_V, P_SK, P_H, P_D, P_GW, P_OUT, P_DBG, P_WS = 64, 66, 68, 72, 74, 76, 78, 80, 82, 84, 86, 88
pp = lambda p: f"s[{p}:{p+1}]"

A = Asm()
STN = {}
for i, n in enumerate("start ptrs kvland p0 b0 p1 b1 p2 b2 p3 b3 p4 b4 p5 b5 p6 b6 p7 b7 kvend f1pub f3seen ba qend bq f1seen haloiss cs0 cs1 cs2 cs3 convend bb bc attend bd f2seen bf mmend end".split()):
    STN[n] = i
def stamp(name):
    if OPT.get("echo") == name:
        A("s_memrealtime s[98:99]\ns_waitcnt lgkmcnt(0)\ns_sub_u32 s97, s98, s96")
    if not OPT["stamps"]: return
    if OPT["stamps"] == 2 and (name in ("b1", "b2", "b3", "b5", "b6", "ptrs") or (name[0] == "p" and name[1].isdigit())): return
    A(f"s_memtime s[98:99]\ns_waitcnt lgkmcnt(0)\nv_writelane_b32 v2, s98, {STN[name]}")

def mksrd(b, p, size):
    A(f"s_mov_b32 s{b}, s{p}\ns_and_b32 s{b+1}, s{p+1}, 0xffff\ns_mov_b32 s{b+2}, {size}\ns_mov_b32 s{b+3}, 0x20000")
def vr(b, n): return f"v[{b}:{b+n-1}]"
def lines(t): return [l.strip() for l in t.split("\n") if l.strip()]

def take_nonce(vt):
    l = A.lab("NON"); d = A.lab("NOND")
    A(f"""
    s_mov_b32 s44, {OPT['spin']}
    {l}:
    v_readfirstlane_b32 s42, v{vt}
    v_readfirstlane_b32 s43, v{vt+1}
    s_cmp_lg_u32 s42, 0
    s_cbranch_scc1 {d}
    global_load_dwordx2 {vr(vt,2)}, v{vt+2}, {pp(P_DBG)} sc1
    s_waitcnt vmcnt(0)
    s_sub_u32 s44, s44, 1
    s_cbranch_scc0 {l}
    {d}:
    """)

def poll(soff, vt, vaddr, preloaded=False, wide=False, low_only=False):
    l = A.lab("POLL"); d = A.lab("POLLD"); c = A.lab("POLLC")
    n = 4 if wide else 2
    A(f"s_mov_b32 s44, {OPT['spin']}")
    if preloaded: A(f"s_branch {c}")
    A(f"""
    {l}:
    buffer_load_dwordx{n} {vr(vt,n)}, v{vaddr}, {srd(SWS)}, {soff} offen sc1
    s_waitcnt vmcnt(0)
    {c}:
    """)
    if low_only:
        A(f"v_xor_b32 v{vt+1}, s43, v{vt+1}\nv_cmp_ne_u32 vcc, s42, v{vt}\nv_and_b32 v{vt}, 0x0fffffff, v{vt+1}\nv_cmp_ne_u32 s[50:51], 0, v{vt}\ns_or_b64 vcc, vcc, s[50:51]")
    else:
        A(f"v_cmp_ne_u64 vcc, {sNON}, {vr(vt,2)}")
    if wide: A(f"v_cmp_ne_u64 s[50:51], {sNON}, {vr(vt+2,2)}\ns_or_b64 vcc, vcc, s[50:51]")
    A(f"""
    s_sub_u32 s44, s44, 1
    s_cbranch_scc1 {d}
    s_cbranch_vccnz {l}
    {d}:
    """)

def flag_store(soff, vt, cache="sc1", hi="s43"):
    A(f"""
    v_mov_b32 v{vt}, s42
    v_mov_b32 v{vt+1}, {hi}
    v_mov_b32 v{vt+2}, 0
    s_mov_b64 exec, 1
    buffer_store_dwordx2 {vr(vt,2)}, v{vt+2}, {srd(SWS)}, {soff} offen {cache}
    s_mov_b64 exec, -1
    """)

A(f"""
s_cmp_ge_u32 s2, 256
s_cbranch_scc1 L_END
s_load_dwordx16 s[64:79], s[0:1], 0
s_load_dwordx8 s[80:87], s[0:1], 64
s_load_dwordx2 s[88:89], s[0:1], 96
s_memrealtime s[46:47]
v_lshrrev_b32 v3, 6, v0
v_and_b32 v1, 63, v0
v_readfirstlane_b32 {sWAVE}, v3
v_mov_b32 v2, 0
s_and_b32 {sCG}, s2, 7
s_lshr_b32 {sTB}, s2, 3
s_lshl_b32 {sRB}, {sCG}, 2
s_lshr_b32 s44, s2, 6
s_add_u32 {sRB}, {sRB}, s44
s_add_u32 {sHG}, {sTB}, {OPT.get("hgs", 0)}
s_and_b32 {sHG}, {sHG}, 7
v_lshrrev_b32 v8, 3, v1
v_and_b32 v9, 7, v1
s_cmp_ge_u32 {sWAVE}, 4
s_cbranch_scc1 L_LOADER
""")
stamp("start")
VXA, VWA, VXB, VWB, VQA = 200, 204, 205, 209, 210
VL16, VUS, VTR = 211, 212, 213
VNON = 214
VSK = 218
A(f"""
v_lshlrev_b32 v19, 7, v1
s_lshl_b32 s44, {sRB}, 16
s_lshl_b32 s45, {sHG}, 13
s_add_u32 s44, s44, s45
s_mul_i32 s45, s2, 6144
v_add_u32 v20, s44, v19              ; x share
v_min_u32 v19, {47*128}, v19
s_mul_i32 s48, {sTB}, {48*1024}
s_add_u32 s48, s48, 384
v_lshl_add_u32 v21, v19, 3, s48
v_add_u32 v19, s45, v19              ; W share
v_lshlrev_b32 v8, 10, v8
v_lshl_add_u32 v8, v9, 4, v8
s_lshl_b32 s44, {sTB}, 16
s_lshl_b32 s45, {sCG}, 7
s_add_u32 s44, s44, s45
v_add_u32 v8, s44, v8
v_subrev_u32 v9, 8192, v8
s_waitcnt lgkmcnt(0)
""")
if OPT.get("echo"): A("s_mov_b32 s96, s46\ns_mov_b32 s97, 0")
stamp("ptrs")
A(f"""
s_cmp_lg_u32 {sWAVE}, 0
s_cbranch_scc1 L_PF1
""")
if OPT["pf"] & 1: A(f"global_load_dword v252, v20, {pp(P_X)}")
A(f"""
s_cmp_lg_u32 s2, 0
s_cbranch_scc1 L_PF2
s_or_b32 s46, s46, 1
v_mov_b32 v12, s46
v_mov_b32 v13, s47
v_mov_b32 v10, 0
s_mov_b64 exec, 1
global_store_dwordx2 v10, v[12:13], {pp(P_DBG)} sc1
s_mov_b64 exec, -1
s_branch L_PF2
L_PF1:
s_cmp_lg_u32 {sWAVE}, 1
s_cbranch_scc1 L_PF3
""")
if OPT["pf"] & 2: A(f"global_load_dword v252, v19, {pp(P_W)}")
A(f"""
L_PF3:
s_cmp_lg_u32 {sWAVE}, 3
s_cbranch_scc1 L_PF2
""")
if OPT["pf"] & 4: A(f"global_load_dword v252, v21, {pp(P_W)}")
A(f"""
L_PF2:
v_and_b32 v10, 15, v1
s_lshl_b32 s44, {sCG}, 6
s_lshl_b32 s45, {sWAVE}, 4
s_add_u32 s50, s44, s45
v_add_u32 v11, s50, v10              ; channel
s_and_b32 s53, {sWAVE}, 1            ; hp
s_lshr_b32 s54, {sWAVE}, 1           ; rt
""")
mksrd(SWS, P_WS, WS_SIZE); mksrd(SK, P_K, 0x200000); mksrd(SV, P_V, 0x200000)
A(f"""
v_and_b32 v16, 31, v1
v_lshlrev_b32 v{VL16}, 4, v1
v_mov_b32 v{VNON+2}, 0
v_lshrrev_b32 v23, 5, v1             ; hh
v_lshrrev_b32 v24, 4, v16
v_mul_u32_u24 v24, 6144, v24
v_lshl_add_u32 v24, v10, 7, v24
s_mul_i32 s45, s54, 12288
v_add_u32 v24, s45, v24
v_lshrrev_b32 v25, 1, v10
v_xor_b32 v25, v25, v23
""")
for s_ in range(4):
    A(f"v_xor_b32 v26, {2*s_}, v25\nv_lshl_add_u32 v{VXA+s_}, v26, 4, v24\nv_add_u32 v{VXB+s_}, {2*24576}, v{VXA+s_}")
A(f"""
v_lshrrev_b32 v26, 2, v1
v_and_b32 v26, 3, v26                ; r
v_lshrrev_b32 v27, 1, v26
v_xor_b32 v27, s53, v27
v_lshlrev_b32 v27, 6, v27
v_lshl_add_u32 v27, v26, 7, v27
v_lshrrev_b32 v28, 4, v1             ; g
v_and_b32 v29, 1, v28
v_lshl_add_u32 v27, v29, 5, v27
v_and_b32 v30, 3, v1                 ; c'
v_lshl_add_u32 v27, v30, 3, v27
v_lshl_add_u32 v{VQA}, v23, 10, v27
v_lshl_add_u32 v27, v23, 11, v27
v_add_u32 v{VWA}, 2048, v27
v_add_u32 v{VWB}, {2048 + 2*24576}, v27
s_lshl_b32 s45, {sWAVE}, 14
s_lshl_b32 s48, {sWAVE}, 11
s_add_u32 m0, s48, {L_KT + 1024}
s_add_u32 s49, s45, 8192
buffer_load_dwordx4 v8, {srd(SK)}, s45 offen lds
s_add_u32 m0, s48, {L_KT + 2048}
v_lshlrev_b32 v12, 3, v11
buffer_load_dwordx4 v8, {srd(SK)}, s49 offen lds
s_add_u32 m0, s48, {L_VT}
s_nop 0
buffer_load_dwordx4 v8, {srd(SV)}, s45 offen lds
s_add_u32 m0, s48, {L_VT + 1024}
s_nop 0
buffer_load_dwordx4 v8, {srd(SV)}, s49 offen lds
s_cmp_lg_u32 {sWAVE}, 2
s_cbranch_scc1 L_NOHALO
s_mov_b32 m0, {L_KT}
s_nop 0
buffer_load_dwordx4 v9, {srd(SK)}, 0 offen lds
L_NOHALO:
global_load_dwordx2 v[222:223], v12, {pp(P_SK)}
v_lshl_add_u32 v27, v28, 3, v26
v_lshlrev_b32 v27, 7, v27
v_lshl_add_u32 v27, v30, 3, v27
s_lshl_b32 s45, {sWAVE}, 5
s_add_u32 s45, s45, {L_KT}
v_add_u32 v{VTR}, s45, v27
v_lshlrev_b32 v12, 12, v11
v_lshlrev_b32 v13, 4, v28
v_sub_u32 v12, v12, v13
v_add_u32 v{VUS}, 48, v12
s_lshl_b32 s45, {sTB}, 7
s_sub_u32 s56, {WS_UR + 4080 - 64 - 48}, s45
""")
def kv_landed():
    A("s_waitcnt vmcnt(0)")
    stamp("kvland")
    A(f"""
    global_load_dwordx2 {vr(VNON,2)}, v{VNON+2}, {pp(P_DBG)} sc1
    v_lshlrev_b32 v{VSK}, 16, v222
    v_and_b32 v{VSK+1}, 0xffff0000, v222
    v_lshlrev_b32 v{VSK+2}, 16, v223
    v_and_b32 v{VSK+3}, 0xffff0000, v223
    """)
KVB = OPT["kvb"]
if KVB == 0: kv_landed()
A("s_barrier")
stamp("b0")
XF = lambda kk: 72 + 4 * kk
pre = []; pre_reads = []
for o in range(2):
    kb, vb = 144 + 10 * o, 150 + 10 * o
    for q in range(3): pre_reads.append(f"ds_read_b64_tr_b16 {vr(kb+2*q,2)}, v{VTR} offset:{o*4096 + (4+4*q)*128}")
    for q in range(2): pre_reads.append(f"ds_read_b64_tr_b16 {vr(vb+2*q,2)}, v{VTR} offset:{9216 + o*4096 + 4*q*128}")
    K0, V0, U0 = 164, 176, 184
    for e in range(1, 12):
        pre.append(f"v_lshlrev_b32 v{K0+e}, 16, v{kb+e//2}" if e % 2 == 0 else f"v_and_b32 v{K0+e}, 0xffff0000, v{kb+e//2}")
    for t in range(8): pre.append(f"v_mul_f32 v{U0+t}, v{K0+4+t}, v{VSK}")
    for e in range(8):
        pre.append(f"v_lshlrev_b32 v{V0+e}, 16, v{vb+e//2}" if e % 2 == 0 else f"v_and_b32 v{V0+e}, 0xffff0000, v{vb+e//2}")
    for j in range(1, 4):
        for t in range(8): pre.append(f"v_fmac_f32 v{U0+t}, v{K0+4+t-j}, v{VSK+j}")
    for t in range(8): pre.append(f"v_mul_f32 v{U0+t}, v{U0+t}, v{V0+t}")
    ob = 192 + 4 * o
    for d in range(4): pre.append(f"v_cvt_pk_bf16_f32 v{ob+d}, v{U0+7-2*d}, v{U0+6-2*d}")
    pre.append(f"buffer_store_dwordx4 {vr(ob,4)}, v{VUS}, {srd(SWS)}, s56 offen offset:{64 - 64*o} sc1")

AK, AV = 8, 24
WF = lambda s_: 40 + 8 * s_
def gemm_reads_l(c, s_):
    sl = SLOT(c); hi = sl >= 2 * 24576; off = sl - (2 * 24576 if hi else 0)
    xa = (VXB if hi else VXA) + s_; wa = VWB if hi else VWA
    o = [f"ds_read_b128 {vr(XF(4*c+s_),4)}, v{xa} offset:{off}"]
    for sec in range(2):
        for half in range(2):
            o.append(f"ds_read_b64_tr_b16 {vr(WF(s_)+4*sec+2*half,2)}, v{wa} offset:{off + s_*6144 + sec*1024 + half*512}")
    return o
fill_on = [False]
def fill(n):
    if not fill_on[0]: return
    for _ in range(n):
        if pre: A(pre.pop(0))
def gemm_ms(c, s_):
    first = (c == 0 and s_ == 0)
    ck = "0" if first else vr(AK, 16); cv = "0" if first else vr(AV, 16)
    x = vr(XF(4*c+s_), 4)
    return [f"v_mfma_f32_32x32x16_bf16 {vr(AK,16)}, {vr(WF(s_),4)}, {x}, {ck}",
            f"v_mfma_f32_32x32x16_bf16 {vr(AV,16)}, {x}, {vr(WF(s_)+4,4)}, {cv}"]
NF = OPT["nf"]
DIST = [4, 4, 3, 3, 3, 3, 0, 0]
for c in range(8):
    if c == KVB:
        for r in pre_reads: A(r)
        A("s_waitcnt lgkmcnt(0)")
        fill_on[0] = True
    R = sum((gemm_reads_l(c, s_) for s_ in range(4)), [])
    M = (gemm_ms(c - 1, 2) + gemm_ms(c - 1, 3) if c > 0 else [None] * 4) + gemm_ms(c, 0) + gemm_ms(c, 1)
    k = 0
    for g, m in enumerate(M):
        if g == 4: A("s_waitcnt lgkmcnt(9)")
        if g == 6: A("s_waitcnt lgkmcnt(10)")
        if m: A(m)
        for r in R[k:k + DIST[g]]: A(r)
        k += DIST[g]
        fill(NF)
    assert not (pre and fill_on[0] and XF(4*c+7) + 3 >= 144), "prepass temps overlap x fragments"
    if c == OPT["f3c"]:
        assert not pre
        A("s_waitcnt vmcnt(0)")
        take_nonce(VNON)
        A(f"""
        s_lshl_b32 s45, {sCG}, 2
        s_add_u32 s45, s45, {sWAVE}
        s_lshl_b32 s45, s45, 5
        s_add_u32 s45, s45, {sTB}
        s_lshl_b32 s45, s45, 3
        s_add_u32 s45, s45, {F3}
        """)
        flag_store("s45", VNON)
        if OPT["local"]:
            A(f"""
            s_cmp_lg_u32 {sWAVE}, 3
            s_cbranch_scc1 L_NOHELLO
            s_getreg_b32 s48, hwreg(HW_REG_XCC_ID, 0, 4)
            s_lshl_b32 s48, s48, 28
            s_xor_b32 s48, s48, s43
            s_lshl_b32 s45, {sRB}, 4
            s_add_u32 s45, s45, {sHG}
            s_lshl_b32 s45, s45, 3
            s_add_u32 s45, s45, {FH}
            """)
            flag_store("s45", VNON, hi="s48")
            A("L_NOHELLO:")
    if c + 1 == KVB: kv_landed()
    A("s_waitcnt lgkmcnt(0)")
    if c < 7:
        stamp(f"p{c+1}"); A("s_barrier"); stamp(f"b{c+1}")
ep = lines(f"""
        s_lshl_b32 s45, {sHG}, 6
        s_lshl_b32 s48, {sRB}, 1
        s_add_u32 s45, s45, s48
        s_add_u32 s45, s45, s54
        s_lshl_b32 s45, s45, 13
        s_lshl_b32 s48, s53, 11
        s_add_u32 s45, s45, s48
        s_add_u32 s49, s45, 4096
        s_lshl_b32 s58, s54, 13
        s_sub_u32 s58, {L_KV + 8192}, s58
        s_add_u32 s58, s58, s48
        v_add_u32 v4, s58, v{VL16}
        s_lshl_b32 s58, s54, 12
        s_add_u32 s58, s58, s48
        v_add_u32 v5, s58, v{VL16}
        s_mov_b32 s58, {f32(0.25 * LOG2E)}
        """)
m2, m3 = gemm_ms(7, 2), gemm_ms(7, 3)
for m in (m2[0], m3[0], m2[1], m3[1]):
    A(m)
    for _ in range(4):
        if ep: A(ep.pop(0))
KP = 236; QP = 228
for i in range(8): A(f"v_cvt_pk_bf16_f32 v{KP+i}, v{AK+2*i}, v{AK+2*i+1}")
A(f"buffer_store_dwordx4 {vr(KP,4)}, v{VL16}, {srd(SWS)}, s45 offen sc1")
A(f"buffer_store_dwordx4 {vr(KP+4,4)}, v{VL16}, {srd(SWS)}, s45 offen offset:1024 sc1")
for i in range(8): A(f"v_cvt_pk_bf16_f32 v{KP+8+i}, v{AV+2*i}, v{AV+2*i+1}")
A(f"buffer_store_dwordx4 {vr(KP+8,4)}, v{VL16}, {srd(SWS)}, s49 offen sc1")
A(f"buffer_store_dwordx4 {vr(KP+12,4)}, v{VL16}, {srd(SWS)}, s49 offen offset:1024 sc1")
stamp("kvend")
A(f"""
s_lshl_b32 s59, {sHG}, 5
s_add_u32 s59, s59, {sRB}
s_lshl_b32 s45, s59, 2
s_add_u32 s45, s45, {sWAVE}
s_lshl_b32 s45, s45, 3
s_add_u32 s45, s45, {F1}
s_waitcnt vmcnt(0)
""")
flag_store("s45", VNON)
stamp("f1pub")
A("s_barrier")
stamp("ba")
AQ = 8
QW = lambda i: 24 + 4 * (i % 12)
LA = 5
def qread(kk):
    A(f"ds_read_b64_tr_b16 {vr(QW(kk),2)}, v{VQA} offset:{kk*2048}\nds_read_b64_tr_b16 {vr(QW(kk)+2,2)}, v{VQA} offset:{kk*2048+512}")
for kk in range(LA): qread(kk)
for kk in range(32):
    rem = min(LA - 1, 31 - kk)
    A(f"s_waitcnt lgkmcnt({2*rem})")
    A(f"v_mfma_f32_32x32x16_bf16 {vr(AQ,16)}, {vr(QW(kk),4)}, {vr(XF(kk),4)}, {'0' if kk == 0 else vr(AQ,16)}")
    if kk + LA < 32: qread(kk + LA)
stamp("qend")
A("s_barrier")
stamp("bq")
A(f"""
ds_write_b128 v4, {vr(KP,4)}
ds_write_b128 v4, {vr(KP+4,4)} offset:1024
ds_write_b128 v4, {vr(KP+8,4)} offset:4096
ds_write_b128 v4, {vr(KP+12,4)} offset:5120
s_add_u32 s45, {sWAVE}, 1
s_cmp_lt_u32 {sRB}, s45
s_cbranch_scc1 L_NOHALO2
s_sub_u32 s45, s59, s45
s_lshl_b32 s63, s45, 14
s_lshl_b32 s45, s45, 5
s_add_u32 s45, s45, {F1}
v_and_b32 v26, 3, v1
v_lshlrev_b32 v26, 3, v26
""")
poll("s45", 24, 26)
stamp("f1seen")
A(f"s_lshl_b32 s48, {sWAVE}, 14")
for t in (1, 0):
    for hf in range(2):
        A(f"s_add_u32 m0, s48, {L_KV + (3 - t)*8192 + hf*4096}\ns_add_u32 s45, s63, {t*8192 + hf*4096}")
        for i in range(4): A(f"buffer_load_dwordx4 v{VL16}, {srd(SWS)}, s45 offen offset:{1024*i} sc1 lds")
stamp("haloiss")
A("L_NOHALO2:")
for i in range(16): A(f"v_mul_f32 v{AQ+i}, s58, v{AQ+i}")
for i in range(8): A(f"v_cvt_pk_bf16_f32 v{QP+i}, v{AQ+2*i}, v{AQ+2*i+1}")
A(f"""
ds_write_b128 v5, {vr(QP,4)}
ds_write_b128 v5, {vr(QP+4,4)} offset:1024
v_and_b32 v10, 31, v1
s_lshl_b32 s45, s54, 7
s_add_u32 s45, s45, {L_G}
v_lshl_add_u32 v13, v10, 2, s45
ds_read_b32 v150, v13
s_waitcnt lgkmcnt(0)
s_barrier
""")
stamp("bb")
A("s_branch L_ATT")

A("L_LOADER:")
stamp("start")
A(f"""
s_sub_u32 s56, {sWAVE}, 4            ; lw
v_lshrrev_b32 v10, 4, v1
v_xor_b32 v11, v9, v10               ; jj = (l&7) ^ (l>>4)
v_lshlrev_b32 v12, 10, v8
v_lshl_add_u32 v4, v11, 4, v12       ; x voffset i=0
v_xor_b32 v5, 64, v4
v_and_b32 v10, 1, v10
v_lshlrev_b32 v10, 2, v10
v_xor_b32 v10, v9, v10
v_mul_u32_u24 v6, 3072, v8
v_lshl_add_u32 v6, v10, 4, v6        ; W voffset
v_lshlrev_b32 v13, 4, v11
s_lshl_b32 s57, {sRB}, 16
s_lshl_b32 s45, s56, 14
s_add_u32 s57, s57, s45              ; x base
s_mul_i32 s58, s56, 49152
s_lshl_b32 s45, {sHG}, 7
s_add_u32 s58, s58, s45
s_add_u32 s58, s58, 1024
s_mul_i32 s59, s56, 6144
s_lshl_b32 s62, s56, 11
""")
if OPT["rot"] == 0: A("s_mov_b32 s60, 0")
elif OPT["rot"] == 1: A(f"s_lshl_b32 s60, {sRB}, 1\ns_add_u32 s60, s60, {sHG}\ns_and_b32 s60, s60, 7")
elif OPT["rot"] == 2: A(f"s_and_b32 s60, {sCG}, 7")
A("s_mov_b32 s61, s60\ns_waitcnt lgkmcnt(0)")
if OPT.get("echo"): A("s_mov_b32 s96, s46\ns_mov_b32 s97, 0")
stamp("ptrs")
mksrd(SX, P_X, 0x200000); mksrd(SW, P_W, 0x180000)
def issue_chunk(c):
    sl = SLOT(c)
    if c < 8:
        A(f"""
        s_lshl_b32 s45, s60, 7
        s_add_u32 s45, s45, s57
        s_mul_i32 s48, s60, 196608
        s_add_u32 s48, s48, s58
        s_add_u32 m0, s59, {sl}
        s_add_u32 s49, s45, 8192
        buffer_load_dwordx4 v4, {srd(SX)}, s45 offen lds
        s_add_u32 m0, s59, {sl+1024}
        s_add_u32 s50, s48, 24576
        buffer_load_dwordx4 v5, {srd(SX)}, s49 offen lds
        s_add_u32 m0, s59, {sl+2048}
        s_add_u32 s60, s60, 1
        buffer_load_dwordx4 v6, {srd(SW)}, s48 offen lds
        buffer_load_dwordx4 v6, {srd(SW)}, s48 offen offset:1024 lds
        s_add_u32 m0, s59, {sl+4096}
        s_and_b32 s60, s60, 7
        buffer_load_dwordx4 v6, {srd(SW)}, s50 offen lds
        buffer_load_dwordx4 v6, {srd(SW)}, s50 offen offset:1024 lds
        """)
    else:
        for lc in range(3 * (c - 8), min(8, 3 * (c - 8) + 3)):
            A(f"""
            s_mul_i32 s48, s60, 196608
            s_add_u32 s48, s48, s58
            s_sub_u32 s48, s48, 1024
            s_add_u32 m0, s62, {lc*8192}
            s_add_u32 s50, s48, 24576
            buffer_load_dwordx4 v6, {srd(SW)}, s48 offen lds
            s_add_u32 m0, s62, {lc*8192 + 1024}
            s_add_u32 s60, s60, 1
            buffer_load_dwordx4 v6, {srd(SW)}, s50 offen lds
            s_and_b32 s60, s60, 7
            """)
issue_chunk(0); issue_chunk(1)
NPRE = OPT["npre"]
for c in range(8):
    A(f"s_lshl_b32 s45, s61, 7\nv_add_u32 v14, s45, v13\nglobal_load_dwordx4 {vr(32+4*c,4)}, v14, {pp(P_GW)}\ns_add_u32 s61, s61, 1\ns_and_b32 s61, s61, 7")
for c in range(2, NPRE): issue_chunk(c)
VCA, VCG, VCD, VAD, VDA = 200, 201, 202, 204, 203
A(f"""
v_lshl_add_u32 v14, v1, 4, s59
v_xor_b32 v15, 64, v14
v_add_u32 v24, {2*24576}, v14
v_add_u32 v25, {2*24576}, v15
v_mov_b32 v26, 0
v_mov_b32 v27, 0
v_mov_b32 v66, 0
v_lshlrev_b32 v{VL16}, 4, v1
s_and_b32 s53, s56, 1
s_lshr_b32 s54, s56, 1               ; ch
s_lshl_b32 s45, {sCG}, 6
s_lshl_b32 s48, {sTB}, 1
s_add_u32 s51, s45, s48
s_add_u32 s51, s51, s54
s_lshl_b32 s45, s51, 12
s_lshl_b32 s48, s53, 11
s_add_u32 s49, s45, s48
v_add_u32 v28, s49, v{VL16}          ; h voffset
v_lshl_add_u32 v30, v9, 2, s45       ; h[0..15] voffset
s_mul_i32 s49, s54, {4*HSTR}
s_add_u32 s49, s49, s48
s_add_u32 s49, s49, {L_H}
v_add_u32 v29, s49, v{VL16}
""")
mksrd(SH, P_H, 0)
A("s_add_u32 s26, s45, 4096")
mksrd(SWS, P_WS, WS_SIZE)
A(f"""
v_and_b32 v10, 15, v1
v_lshrrev_b32 v11, 4, v1             ; g
v_and_b32 v12, 1, v11
v_mul_u32_u24 v31, {4*HSTR}, v12
v_lshl_add_u32 v31, v10, 2, v31
s_mul_i32 s49, s56, {HSTR}
s_add_u32 s49, s49, {L_H + 4096}
v_add_u32 v31, s49, v31
ds_write_b32 v31, v66
s_mul_i32 s55, s54, {URSTR}
s_lshl_b32 s48, s53, 8
s_add_u32 s45, s55, s48
s_add_u32 s45, s45, {L_UR + 4096}
v_lshl_add_u32 v31, v1, 2, s45
ds_write_b32 v31, v66
s_lshl_b32 s45, s56, 7
s_add_u32 s52, s45, {L_MISC}
v_and_b32 v31, 31, v1
v_lshl_add_u32 v31, v31, 2, s52
ds_write_b32 v31, v66
v_add_u32 v31, 1, v10                ; beta
v_and_b32 v67, 3, v31
v_mul_u32_u24 v67, {HSTR}, v67
v_and_b32 v68, 28, v31
v_lshl_add_u32 v68, v11, 3, v68
v_lshl_add_u32 v67, v68, 1, v67
s_mul_i32 s45, s54, {4*HSTR}
s_add_u32 s45, s45, s48
s_add_u32 s45, s45, {L_H}
v_add_u32 v{VCA}, s45, v67
v_lshlrev_b32 v67, 5, v10
v_lshlrev_b32 v69, 4, v11
v_sub_u32 v68, v69, v67
s_add_u32 s49, s55, s48
s_add_u32 s49, s49, {L_UR + 512}
v_add_u32 v{VCG}, s49, v68
v_and_b32 v68, 16, v69
v_sub_u32 v68, v68, v67
s_lshl_b32 s48, s53, 11
s_sub_u32 s45, s55, s48
s_add_u32 s45, s45, {L_UR + 4064 - 1536}
v_add_u32 v{VCD}, s45, v68
v_lshl_add_u32 v68, v12, 3, v31
v_lshlrev_b32 v68, 1, v68
v_lshrrev_b32 v69, 5, v1
v_lshl_add_u32 v68, v69, 6, v68
v_add_u32 v{VDA}, s52, v68
v_lshl_add_u32 v208, v11, 3, v67     ; y voffset
s_and_b32 s45, s51, 63
s_lshr_b32 s45, s45, 4
s_lshl_b32 s48, {sCG}, 2
s_add_u32 s45, s45, s48
s_lshl_b32 s45, s45, 8
s_add_u32 s63, s45, {F3}
v_and_b32 v70, 31, v1
v_lshlrev_b32 v70, 3, v70
s_lshl_b32 s45, s51, 1
v_mov_b32 v31, s45
""")
def gate_dot(c, b):
    for i in range(4):
        A(f"v_dot2_f32_bf16 v26, v{b+i}, v{32+4*c+i}, v26\nv_dot2_f32_bf16 v27, v{b+4+i}, v{32+4*c+i}, v27")
HD = 72
NH = 7
for c in range(8):
    n = [6 + 8 + 6 * (NPRE - 2), 12, 12, 12, 12, 12 + NH, 12 + NH, 12][c]
    A(f"s_waitcnt vmcnt({n})")
    stamp(f"p{c}")
    A("s_barrier")
    stamp(f"b{c}")
    sl = SLOT(c); hi = sl >= 2 * 24576; off = sl - (2 * 24576 if hi else 0)
    xb = 88 if c == 0 else 16
    A(f"ds_read_b128 {vr(xb,4)}, v{24 if hi else 14} offset:{off}\nds_read_b128 {vr(xb+4,4)}, v{25 if hi else 15} offset:{off+1024}")
    if c == 0:
        for cc in range(NPRE, 4): issue_chunk(cc)
    if c == 7: A(f"buffer_load_dwordx2 v[68:69], v70, {srd(SWS)}, s63 offen sc1")
    if 1 <= c <= 7: issue_chunk(c + 3)
    if c == 4:
        for p in range(2):
            A(f"buffer_load_dwordx4 {vr(HD+8*p,4)}, v28, {srd(SH)}, 0 offen offset:{1024*p}")
            A(f"buffer_load_dwordx2 {vr(HD+8*p+4,2)}, v28, {srd(SH)}, 0 offen offset:{1024*p+16}")
        A(f"buffer_load_dword v108, v30, {srd(SH)}, 0 offen")
        A(f"global_load_ushort v109, v31, {pp(P_D)}")
        A(f"global_load_dwordx2 v[64:65], v66, {pp(P_DBG)} sc1")
    A("s_waitcnt lgkmcnt(0)")
    if c == 1: gate_dot(0, 88)
    if c >= 1: gate_dot(c, 16)
A(f"v_lshl_add_u32 v30, v9, 2, s52\nv_mov_b32 v31, s52\nds_write_b32 v30, v108 offset:32\nds_write_b16 v31, v109 offset:96")
for p in range(2):
    d = HD + 8 * p; t = 112 + 12 * p
    A(f"ds_write_b128 v29, {vr(d,4)} offset:{1024*p}")
    for i in range(4): A(f"v_alignbit_b32 v{t+i}, v{d+i+1}, v{d+i}, 16")
    A(f"ds_write_b128 v29, {vr(t,4)} offset:{1024*p + HSTR}")
    for i in range(4): A(f"v_mov_b32 v{t+4+i}, v{d+i+1}")
    A(f"ds_write_b128 v29, {vr(t+4,4)} offset:{1024*p + 2*HSTR}")
    for i in range(4): A(f"v_alignbit_b32 v{t+8+i}, v{d+i+2}, v{d+i+1}, 16")
    A(f"ds_write_b128 v29, {vr(t+8,4)} offset:{1024*p + 3*HSTR}")
A(f"ds_read_b128 {vr(VAD,4)}, v{VDA}")
take_nonce(64)
A("s_waitcnt vmcnt(4)")
poll("s63", 68, 70, preloaded=True)
stamp("f3seen")
A(f"""
s_lshl_b32 s45, s51, 12
s_lshl_b32 s48, s53, 11
s_add_u32 s57, s45, s48
s_add_u32 s45, s57, {WS_UR}
s_add_u32 s49, s55, s48
s_add_u32 m0, s49, {L_UR}
s_add_u32 s57, s57, {WS_Y}
buffer_load_dwordx4 v{VL16}, {srd(SWS)}, s45 offen sc1 lds
buffer_load_dwordx4 v{VL16}, {srd(SWS)}, s45 offen offset:1024 sc1 lds
""")
for r in (26, 27): A(f"v_add_f32_dpp v{r}, v{r}, v{r} quad_perm:[1,0,3,2] row_mask:0xf bank_mask:0xf")
for r in (26, 27): A(f"v_add_f32_dpp v{r}, v{r}, v{r} quad_perm:[2,3,0,1] row_mask:0xf bank_mask:0xf")
for r in (26, 27): A(f"v_add_f32_dpp v{r}, v{r}, v{r} row_half_mirror row_mask:0xf bank_mask:0xf")
A(f"s_mov_b32 s45, {f32(-LOG2E)}")
for r in (26, 27): A(f"v_mul_f32 v{r}, s45, v{r}")
for r in (26, 27): A(f"v_exp_f32 v{r}, v{r}")
for r in (26, 27): A(f"v_add_f32 v{r}, 1.0, v{r}")
for r in (26, 27): A(f"v_rcp_f32 v{r}, v{r}")
A(f"""
s_lshl_b32 s45, s56, 6
s_add_u32 s45, s45, {L_G}
v_lshl_add_u32 v28, v8, 2, s45
ds_write_b32 v28, v26
ds_write_b32 v28, v27 offset:32
s_lshl_b32 s45, s56, 12
s_add_u32 s45, s45, {L_SCR}
v_add_u32 v11, s45, v{VL16}
s_xor_b32 s48, s56, 1
s_lshl_b32 s48, s48, 12
s_add_u32 s48, s48, {L_SCR}
v_add_u32 v12, s48, v{VL16}
s_waitcnt vmcnt(0) lgkmcnt(0)
s_barrier
""")
stamp("ba")
CA = [72, 136]; CG = [104, 168]; ACC = 24; DB = 56
def conv_reads(s):
    b = s & 1; out = []
    for i in range(8):
        out.append(f"ds_read_b128 {vr(CG[b]+4*i,4)}, v{VCG} offset:{512*(7-i) + 64*s}")
        out.append(f"ds_read_b64 {vr(CA[b]+4*i,2)}, v{VCA} offset:{512*i + 64*s}")
        out.append(f"ds_read_b64 {vr(CA[b]+4*i+2,2)}, v{VCA} offset:{512*i + 64*s + 8}")
    return out
def conv_mfmas(s):
    b = s & 1; out = []; seen = set()
    pairs = sorted([(i, d) for i in range(8) for d in range(8) if i + d <= 7], key=lambda p: (max(p), p[0] + p[1]))
    for i, d in pairs:
        j = i + d
        c = "0" if (s == 0 and j not in seen) else vr(ACC + 4*j, 4)
        seen.add(j)
        out.append((max(i, d), f"v_mfma_f32_16x16x32_bf16 {vr(ACC+4*j,4)}, {vr(CA[b]+4*i,4)}, {vr(CG[b]+4*d,4)}, {c}"))
    return out
r0 = conv_reads(0)
for r in r0: A(r)
A("s_waitcnt lgkmcnt(12)")
for s in range(4):
    nxt = conv_reads(s + 1) if s < 3 else [f"ds_read_b128 {vr(DB+4*jj,4)}, v{VCD} offset:{512*(3-jj)}" for jj in range(4)]
    mm = conv_mfmas(s)
    k = 0
    for n, (lvl, m) in enumerate(mm):
        if s == 0 and n == 16:
            assert mm[15][0] == 3 and lvl == 4
            A("s_waitcnt lgkmcnt(4)")
        A(m)
        if s == 0 and n < 12: continue
        if k < len(nxt): A(nxt[k]); k += 1
    assert k == len(nxt)
    A("s_waitcnt lgkmcnt(0)")
    stamp(f"cs{s}")
    if s == OPT.get("bqs", 1):
        A("s_barrier"); stamp("bq")
A(f"""
s_cmp_eq_u32 s53, 0
s_cbranch_scc0 L_KH1
""")
for jj in range(4): A(f"v_mfma_f32_16x16x32_bf16 {vr(ACC+4*jj,4)}, {vr(VAD,4)}, {vr(DB+4*jj,4)}, {vr(ACC+4*jj,4)}")
for jj in range(4): A(f"ds_write_b128 v11, {vr(ACC+16+4*jj,4)} offset:{1024*jj}")
A("s_branch L_KHD\nL_KH1:")
for jj in range(4): A(f"ds_write_b128 v11, {vr(ACC+4*jj,4)} offset:{1024*jj}")
A("s_waitcnt lgkmcnt(0)")
for jj in range(4): A(f"v_mfma_f32_16x16x32_bf16 {vr(ACC+4*jj,4)}, {vr(VAD,4)}, {vr(DB+4*jj,4)}, {vr(ACC+16+4*jj,4)}")
A("L_KHD:")
stamp("convend")
A("s_waitcnt lgkmcnt(0)\ns_barrier")
stamp("bb")
for jj in range(4): A(f"ds_read_b128 {vr(DB+4*jj,4)}, v12 offset:{1024*jj}")
A("s_waitcnt lgkmcnt(0)")
for i in range(16): A(f"v_add_f32 v{ACC+i}, v{ACC+i}, v{DB+i}")
for jj in range(4):
    A(f"v_cvt_pk_bf16_f32 v{160+2*jj}, v{ACC+4*jj}, v{ACC+4*jj+1}\nv_cvt_pk_bf16_f32 v{161+2*jj}, v{ACC+4*jj+2}, v{ACC+4*jj+3}")
    A(f"buffer_store_dwordx2 {vr(160+2*jj,2)}, v208, {srd(SWS)}, s57 offen offset:{512*jj} sc1")

A("L_ATT:")
MD, MF = 16, 32
S = [48, 128]; P = 80; O = 88; KF = [104, 108]; VF = [112, 120]; QF = 4
if OPT["local"]:
    A(f"""
    s_lshl_b32 s58, {sRB}, 7
    s_add_u32 s58, s58, {FH}
    v_and_b32 v154, 7, v1
    v_lshlrev_b32 v154, 3, v154
    buffer_load_dwordx2 v[152:153], v154, {srd(SWS)}, s58 offen sc1
    """)
mksrd(SWO, P_WO, 0x80000)
A(f"""
s_and_b32 s53, {sWAVE}, 3
s_lshr_b32 s54, {sWAVE}, 2
s_lshl_b32 s55, {sRB}, 1
s_add_u32 s55, s55, s54
s_add_u32 s55, s55, 1
s_min_u32 s55, s55, 9                ; ntiles
v_lshlrev_b32 v8, 4, v1
s_lshl_b32 s45, {sWAVE}, 10
v_add_u32 v9, s45, v8
s_lshl_b32 s45, s54, 13
s_sub_u32 s45, {L_KV + 8192}, s45
s_lshl_b32 s48, s53, 10
s_add_u32 s48, s48, s45
v_add_u32 v10, s48, v8
s_lshr_b32 s48, s53, 1
s_lshl_b32 s48, s48, 11
s_add_u32 s48, s48, s45
s_and_b32 s49, s53, 1
s_lshl_b32 s49, s49, 8
s_add_u32 s48, s48, s49
s_add_u32 s48, s48, 4096
v_add_u32 v11, s48, v8
v_add_u32 v12, 0x8000, v10
v_add_u32 v13, 0x8000, v11
s_mov_b32 s60, 0x0000ffff
s_mov_b32 s61, 0x0000ffff
v_and_b32 v14, 31, v1
v_lshrrev_b32 v15, 5, v1
v_lshlrev_b32 v15, 2, v15
v_sub_u32 v14, v14, v15
v_mov_b32 v15, 0xff800000
v_mov_b32 v3, 0
""")
for r0_ in range(0, 16, 4):
    for r in range(r0_, r0_ + 4):
        m = 8 * (r >> 2) + (r & 3)
        A(f"v_cmp_le_i32 s[{16+2*(r&3)}:{17+2*(r&3)}], {m}, v14")
    for r in range(r0_, r0_ + 4):
        A(f"v_cndmask_b32 v{MD+r}, v15, v3, s[{16+2*(r&3)}:{17+2*(r&3)}]\nv_cndmask_b32 v{MF+r}, v3, v15, s[{16+2*(r&3)}:{17+2*(r&3)}]")
for b in VF:
    for i in range(8): A(f"v_mov_b32 v{b+i}, 0x3f803f80")
A(f"""
v_lshrrev_b32 v14, 3, v1
v_and_b32 v15, 7, v1
v_lshrrev_b32 v144, 2, v1
v_and_b32 v144, 4, v144
v_xor_b32 v15, v15, v144
v_lshlrev_b32 v14, 10, v14
v_lshl_add_u32 v14, v15, 4, v14
s_lshl_b32 s62, {sWAVE}, 16
s_lshl_b32 s45, {sHG}, 7
s_add_u32 s62, s62, s45
s_lshl_b32 s63, {sWAVE}, 13
s_add_u32 s63, s63, {L_WO}
s_lshl_b32 s59, {sCG}, 5
s_add_u32 s59, s59, {sTB}
s_lshl_b32 s59, s59, 2
s_add_u32 s59, s59, s53
s_lshl_b32 s59, s59, 3
s_add_u32 s59, s59, {F4}
s_cmp_ge_u32 {sWAVE}, 4
s_cbranch_scc1 L_NOHW
s_waitcnt vmcnt(0)
""")
if OPT["prio"]: A("s_setprio 2\ns_branch L_HW2\nL_NOHW:\ns_setprio 1\nL_HW2:")
else: A("L_NOHW:")
A("s_barrier")
stamp("bc")
def rdK(j, dst):
    a, o = (10, j * 8192) if j < 4 else (12, (j - 4) * 8192)
    A(f"ds_read_b128 {vr(dst,4)}, v{a} offset:{o}")
def rdV(j, dst):
    a, o = (11, j * 8192) if j < 4 else (13, (j - 4) * 8192)
    A(f"s_mov_b64 exec, s[60:61]\nds_read_b128 {vr(dst,4)}, v{a} offset:{o}\nds_read_b128 {vr(dst+4,4)}, v{a} offset:{o+1024}\ns_mov_b64 exec, -1")
def wo_dma(i):
    A(f"s_add_u32 m0, s63, {1024*i}\ns_add_u32 s45, s62, {8192*i}\nbuffer_load_dwordx4 v14, {srd(SWO)}, s45 offen lds")
def cmask(j): return vr(MD, 16) if j == 0 else (vr(MF, 16) if j == 8 else "0")
def f4_publish(n):
    l = A.lab("NOF4")
    A(f"s_cmp_lt_u32 {sWAVE}, 4\ns_cbranch_scc1 {l}\ns_waitcnt vmcnt({n})")
    flag_store("s59", 144)
    A(f"{l}:")
A(f"ds_read_b128 {vr(QF,4)}, v9")
rdK(0, KF[0]); rdK(1, KF[1]); rdV(0, VF[0])
A("s_waitcnt lgkmcnt(3)")
A(f"v_mfma_f32_32x32x16_bf16 {vr(S[0],16)}, {vr(KF[0],4)}, {vr(QF,4)}, {cmask(0)}")
F4J = OPT["f4j"]
for j in range(9):
    sb = S[j & 1]; vb = VF[j & 1]
    if j < 8:
        A("s_waitcnt lgkmcnt(2)")
        A(f"v_mfma_f32_32x32x16_bf16 {vr(S[(j+1)&1],16)}, {vr(KF[(j+1)&1],4)}, {vr(QF,4)}, {cmask(j+1)}")
    if j < 7: rdK(j + 2, KF[j & 1])
    if j == F4J: f4_publish(F4J)
    if j < 8: rdV(j + 1, VF[(j + 1) & 1]); wo_dma(j)
    if j == 6 and OPT["prio"]:
        A(f"s_cmp_ge_u32 {sWAVE}, 4\ns_cbranch_scc1 L_PRK\ns_setprio 0\nL_PRK:")
    for i in range(8): A(f"v_exp_f32 v{sb+i}, v{sb+i}")
    for i in range(4): A(f"v_cvt_pk_bf16_f32 v{P+i}, v{sb+2*i}, v{sb+2*i+1}")
    for i in range(8, 10): A(f"v_exp_f32 v{sb+i}, v{sb+i}")
    A(f"s_waitcnt lgkmcnt({3 if j < 7 else (2 if j < 8 else 0)})")
    A(f"v_mfma_f32_32x32x16_bf16 {vr(O,16)}, {vr(vb,4)}, {vr(P,4)}, {'0' if j == 0 else vr(O,16)}")
    for i in range(10, 16): A(f"v_exp_f32 v{sb+i}, v{sb+i}")
    for i in range(4, 8): A(f"v_cvt_pk_bf16_f32 v{P+i}, v{sb+2*i}, v{sb+2*i+1}")
    if j < 8: A(f"s_cmp_eq_u32 s55, {j+1}")
    A(f"v_mfma_f32_32x32x16_bf16 {vr(O,16)}, {vr(vb+4,4)}, {vr(P+4,4)}, {vr(O,16)}")
    if j < 8: A("s_cbranch_scc1 L_EARLY")
A(f"""
L_ATTFIN:
s_lshl_b32 s57, {sRB}, 1
s_add_u32 s57, s57, s54
s_lshl_b32 s57, s57, 5
s_lshl_b32 s48, {sHG}, 2
s_add_u32 s57, s57, s48
s_add_u32 s57, s57, s53
s_lshl_b32 s57, s57, 10
s_add_u32 s57, s57, {WS_O}
""")
if OPT["local"]:
    A("s_waitcnt vmcnt(8)")
    poll("s58", 152, 154, preloaded=True, low_only=True)
    A(f"""
    s_getreg_b32 s48, hwreg(HW_REG_XCC_ID, 0, 4)
    s_lshl_b32 s48, s48, 28
    v_cmp_ne_u32 vcc, s48, v153
    s_cmp_eq_u64 vcc, 0
    s_cselect_b32 {sLOC}, {1 if OPT['local'] == 1 else 0}, 0
    """)
A(f"""
s_mov_b32 s45, {f32(2.0**-30)}
s_mov_b32 s48, {f32(2.0**30)}
s_waitcnt lgkmcnt(0)
v_cmp_nlt_f32 vcc, s45, v{O+8}
v_cmp_ngt_f32 s[50:51], s48, v{O+8}
v_rcp_f32 v{O+9}, v{O+8}
s_or_b64 vcc, vcc, s[50:51]
""")
A("s_branch L_SLOW" if OPT["force_slow"] else "s_cbranch_vccnz L_SLOW")
A("L_ATTNORM:")
for i in range(8): A(f"v_mul_f32 v{O+i}, v{O+i}, v{O+9}")
for i in range(4): A(f"v_cvt_pk_bf16_f32 v{P+i}, v{O+2*i}, v{O+2*i+1}")
A(f"""
s_lshl_b32 s58, {sRB}, 9
s_add_u32 s58, s58, {F2}
s_lshl_b32 s45, {sHG}, 3
s_add_u32 s45, s45, {sWAVE}
s_lshl_b32 s45, s45, 3
s_add_u32 s45, s45, s58
""")
if OPT["local"]:
    A(f"""
    s_cmp_eq_u32 {sLOC}, 0
    s_cbranch_scc1 L_OGLOB
    buffer_store_dwordx4 {vr(P,4)}, v8, {srd(SWS)}, s57 offen
    """)
    stamp("attend")
    A("s_waitcnt vmcnt(0)")
    flag_store("s45", 144, cache="")
    A("s_branch L_ODONE\nL_OGLOB:")
A(f"buffer_store_dwordx4 {vr(P,4)}, v8, {srd(SWS)}, s57 offen sc1")
if not OPT["local"]: stamp("attend")
A("s_waitcnt vmcnt(0)")
flag_store("s45", 144)
A(f"""
L_ODONE:
s_setprio 0
s_lshl_b32 s45, {sWAVE}, 6
s_add_u32 s58, s58, s45
v_and_b32 v18, 7, v1
v_lshlrev_b32 v18, 3, v18
s_lshl_b32 s48, {sWAVE}, 12
s_lshl_b32 s49, {sRB}, 16
s_add_u32 s49, s49, s48
s_add_u32 s49, s49, {WS_O}
s_add_u32 s52, s49, 32768
s_barrier
""")
stamp("bd")
poll("s58", 16, 18)
stamp("f2seen")
A(f"s_add_u32 m0, s48, {L_O}\ns_nop 0")
for i in range(4): A(f"buffer_load_dwordx4 v8, {srd(SWS)}, s49 offen offset:{1024*i} sc1 lds")
A(f"s_add_u32 m0, s48, {L_O + 32768}\ns_nop 0")
for i in range(4): A(f"buffer_load_dwordx4 v8, {srd(SWS)}, s52 offen offset:{1024*i} sc1 lds")

A(f"""
s_cmp_ge_u32 {sWAVE}, 4
s_cbranch_scc1 L_FHELP
""")
mksrd(SX, P_X, 0x200000); mksrd(SOUT, P_OUT, 0x200000)
A(f"""
s_and_b32 s53, {sWAVE}, 1            ; ct
s_lshr_b32 s54, {sWAVE}, 1           ; rt
v_mov_b32 v9, v150
v_and_b32 v10, 31, v1
v_lshrrev_b32 v11, 5, v1
v_lshlrev_b32 v12, 10, v10
v_lshl_add_u32 v12, v11, 5, v12
s_lshl_b32 s45, {sRB}, 16
s_lshl_b32 s48, s54, 15
s_add_u32 s45, s45, s48
s_lshl_b32 s48, {sHG}, 7
s_add_u32 s45, s45, s48
s_lshl_b32 s48, s53, 6
s_add_u32 s56, s45, s48
buffer_load_dwordx4 v[16:19], v12, {srd(SX)}, s56 offen
buffer_load_dwordx4 v[20:23], v12, {srd(SX)}, s56 offen offset:16
v_lshrrev_b32 v13, 2, v1
v_and_b32 v13, 3, v13
v_lshrrev_b32 v14, 1, v13
v_xor_b32 v14, s53, v14
v_lshlrev_b32 v14, 6, v14
v_lshl_add_u32 v15, v11, 2, v13
v_lshl_add_u32 v14, v15, 7, v14
v_and_b32 v15, 1, v1
v_lshl_add_u32 v14, v15, 5, v14
v_lshrrev_b32 v15, 4, v1
v_and_b32 v15, 1, v15
v_lshl_add_u32 v14, v15, 4, v14
v_lshrrev_b32 v24, 1, v1
v_and_b32 v24, 1, v24
v_lshl_add_u32 v14, v24, 3, v14
v_add_u32 v14, {L_WO}, v14
v_lshl_add_u32 v24, v11, 4, v13
v_lshlrev_b32 v24, 7, v24
v_lshl_add_u32 v24, v15, 5, v24
v_and_b32 v25, 3, v1
v_lshl_add_u32 v24, v25, 3, v24
s_lshl_b32 s45, s53, 12
s_lshl_b32 s48, s54, 6
s_add_u32 s45, s45, s48
s_add_u32 s45, s45, {L_Y}
v_add_u32 v24, s45, v24
s_lshl_b32 s45, s54, 15
s_add_u32 s45, s45, {L_O}
v_add_u32 v25, s45, v8
""")
for k in range(32):
    A(f"ds_read_b64_tr_b16 {vr(128+4*k,2)}, v14 offset:{k*2048}\nds_read_b64_tr_b16 {vr(130+4*k,2)}, v14 offset:{k*2048+1024}")
A("s_waitcnt vmcnt(2)\ns_barrier")
stamp("bf")
OA = 64; OF = 80; NB = 8; BT = 48
for k in range(NB): A(f"ds_read_b128 {vr(OF+4*k,4)}, v25 offset:{1024*k}")
for k in range(32):
    rem = min(NB - 1, 31 - k)
    A(f"s_waitcnt lgkmcnt({rem})")
    A(f"v_mfma_f32_32x32x16_bf16 {vr(OA,16)}, {vr(128+4*k,4)}, {vr(OF+4*(k%NB),4)}, {'0' if k == 0 else vr(OA,16)}")
    if k + NB < 32: A(f"ds_read_b128 {vr(OF+4*(k%NB),4)}, v25 offset:{1024*(k+NB)}")
A("s_barrier")
for q in range(4): A(f"ds_read_b64_tr_b16 {vr(32+2*q,2)}, v24 offset:{512*q}")
stamp("mmend")
A("v_sub_f32 v26, 1.0, v9\ns_waitcnt vmcnt(0)")
for e in range(16):
    A(f"v_lshlrev_b32 v{BT+e}, 16, v{16+e//2}" if e % 2 == 0 else f"v_and_b32 v{BT+e}, 0xffff0000, v{16+e//2}")
    A(f"v_mul_f32 v{BT+e}, v{BT+e}, v26")
for e in range(16): A(f"v_mul_f32 v{OA+e}, v9, v{OA+e}")
A("s_waitcnt lgkmcnt(0)")
for e in range(16):
    A(f"v_lshlrev_b32 v27, 16, v{32+e//2}" if e % 2 == 0 else f"v_and_b32 v27, 0xffff0000, v{32+e//2}")
    A(f"v_fmac_f32 v{OA+e}, v{BT+e}, v27")
for i in range(8): A(f"v_cvt_pk_bf16_f32 v{16+i}, v{OA+2*i}, v{OA+2*i+1}")
A(f"buffer_store_dwordx4 v[16:19], v12, {srd(SOUT)}, s56 offen\nbuffer_store_dwordx4 v[20:23], v12, {srd(SOUT)}, s56 offen offset:16")
A("s_branch L_FIN\nL_FHELP:")
A(f"""
s_lshl_b32 s45, {sHG}, 10
s_lshl_b32 s48, s53, 8
s_add_u32 s45, s45, s48
s_add_u32 s58, s45, {F4}
v_and_b32 v18, 31, v1
v_lshlrev_b32 v18, 3, v18
buffer_load_dwordx2 v[16:17], v18, {srd(SWS)}, s58 offen sc1
v_lshrrev_b32 v20, 3, v1
v_lshlrev_b32 v20, 12, v20
v_and_b32 v19, 7, v1
v_lshl_add_u32 v20, v19, 4, v20
s_lshl_b32 s48, {sHG}, 18
s_lshl_b32 s45, {sRB}, 7
s_add_u32 s48, s48, s45
s_lshl_b32 s45, s53, 16
s_add_u32 s48, s48, s45
s_add_u32 s48, s48, {WS_Y}
s_add_u32 s49, s48, 32768
s_lshl_b32 s52, s53, 11
s_waitcnt vmcnt(1)
s_barrier
s_waitcnt vmcnt(0)
""")
poll("s58", 16, 18, preloaded=True)
A(f"""
s_add_u32 m0, s52, {L_Y}
s_nop 0
buffer_load_dwordx4 v20, {srd(SWS)}, s48 offen sc1 lds
s_add_u32 m0, s52, {L_Y + 1024}
s_nop 0
buffer_load_dwordx4 v20, {srd(SWS)}, s49 offen sc1 lds
s_waitcnt vmcnt(0)
s_barrier
L_FIN:
""")
if OPT.get("echo"):
    A("s_waitcnt vmcnt(0)")
    if not OPT["stamps"]: stamp("end")
    A("""
    s_memrealtime s[98:99]
    s_waitcnt lgkmcnt(0)
    s_add_u32 s97, s97, s98
    L_ECHO:
    s_memrealtime s[98:99]
    s_waitcnt lgkmcnt(0)
    s_sub_u32 s45, s98, s97
    s_cmp_lt_i32 s45, 0
    s_cbranch_scc1 L_ECHO
    """)
if OPT["stamps"]:
    A("s_waitcnt vmcnt(0)")
    stamp("end")
    A(f"""
    s_memrealtime s[98:99]
    s_waitcnt lgkmcnt(0)
    v_writelane_b32 v2, s98, 63
    v_writelane_b32 v2, s46, 62
    s_lshl_b32 s45, s2, 3
    s_add_u32 s45, s45, {sWAVE}
    s_lshl_b32 s45, s45, 8
    s_add_u32 s45, s45, {WS_ST}
    v_lshlrev_b32 v3, 2, v1
    buffer_store_dword v2, v3, {srd(SWS)}, s45 offen
    """)
A("L_END:\ns_endpgm")

A("L_EARLY:")
f4_publish(0)
for i in range(8): wo_dma(i)
A("s_branch L_ATTFIN")
A("L_SLOW:\nv_mov_b32 v145, 0xff800000")
for j in range(9):
    rdK(j, KF[0])
    A("s_waitcnt lgkmcnt(0)")
    A(f"v_mfma_f32_32x32x16_bf16 {vr(S[0],16)}, {vr(KF[0],4)}, {vr(QF,4)}, {cmask(j)}")
    for i in range(0, 16, 2): A(f"v_max3_f32 v145, v{S[0]+i}, v{S[0]+i+1}, v145")
    if j < 8: A(f"s_cmp_eq_u32 s55, {j+1}\ns_cbranch_scc1 L_SLOW2")
A("L_SLOW2:\nv_mov_b32 v146, v145\nv_permlane32_swap_b32 v145, v146\nv_max_f32 v145, v145, v146")
for j in range(9):
    rdK(j, KF[0]); rdV(j, VF[0])
    A("s_waitcnt lgkmcnt(0)")
    A(f"v_mfma_f32_32x32x16_bf16 {vr(S[0],16)}, {vr(KF[0],4)}, {vr(QF,4)}, {cmask(j)}")
    for i in range(16): A(f"v_sub_f32 v{S[0]+i}, v{S[0]+i}, v145")
    for i in range(16): A(f"v_exp_f32 v{S[0]+i}, v{S[0]+i}")
    for i in range(8): A(f"v_cvt_pk_bf16_f32 v{P+i}, v{S[0]+2*i}, v{S[0]+2*i+1}")
    A(f"v_mfma_f32_32x32x16_bf16 {vr(O,16)}, {vr(VF[0],4)}, {vr(P,4)}, {'0' if j == 0 else vr(O,16)}")
    A(f"v_mfma_f32_32x32x16_bf16 {vr(O,16)}, {vr(VF[0]+4,4)}, {vr(P+4,4)}, {vr(O,16)}")
    if j < 8: A(f"s_cmp_eq_u32 s55, {j+1}\ns_cbranch_scc1 L_SLOW3")
A(f"L_SLOW3:\ns_nop 11\nv_rcp_f32 v{O+9}, v{O+8}\ns_nop 0\ns_branch L_ATTNORM")

n = A.fix(verbose=bool(OPT.get("verbose", 0)))
label = NAME + "_kernel"
hdr = open("cdna_kernels/" + NAME + ".s.ref").read().split("; Override launch")[0]
out = hdr + f"""; @launch grid=(256,1,1) block=(512,1,1) lds=163840
; stamps: {" ".join(STN.keys())}
.amdgcn_target "amdgcn-amd-amdhsa--gfx950"
.text
.globl {label}
.p2align 8
.type {label},@function
{label}:
{A.text()}
.section .rodata,"a"
.p2align 6
.amdhsa_kernel {label}
  .amdhsa_next_free_vgpr 256
  .amdhsa_next_free_sgpr 102
  .amdhsa_accum_offset 256
  .amdhsa_group_segment_fixed_size 0
  .amdhsa_kernarg_size 104
  .amdhsa_user_sgpr_count 2
  .amdhsa_user_sgpr_kernarg_segment_ptr 1
  .amdhsa_system_sgpr_workgroup_id_x 1
.end_amdhsa_kernel
"""
open(sys.argv[1], "w").write(out)
print(f"wrote {sys.argv[1]}: {len(A.lines)} lines, {n} nops inserted")
```

```python
import sys, math, struct
sys.path.insert(0, "gen")
from asmx import Asm

NAME = "gated_mix__sliding_block__ssm_conv_h3__prompt"
OPT = dict(stamps=0, force_slow=0, spin=1 << 20, pf=1, f3c=1, local=1, split=4, f4i=2, cpf=1, span=20992,
           slp=0, lq=1, g1=4, lat=40, lf1p=70, lpre=4, nqc=3, hlate=1, lp0=4, lprio=1, woe=3, gw0=3, lw0=0, gri=1, c2late=0, hcp=2, f1p=10, yi=3)
for a in sys.argv[2:]:
    k, v = a.split("="); OPT[k] = v if k == "echo" else int(v, 0)

WS_KV, WS_O, WS_UR, WS_Y, WS_F, WS_ST, WS_SIZE = 0xC00000, 0x400000, 0x600000, 0x800000, 0xA00000, 0xB00000, 0x1000000
F3 = WS_F
F1 = WS_F + 0x2000
F4 = WS_F + 0x4000
F2 = WS_F + 0x8000
SLOTS = [0, 24576, 49152, 73728] * 2
L_H = 98304 + 64; HSTR = 4160
L_X = 115200
L_UR = 131584; URSTR = 4608
L_MISC = 140800
L_Z = L_MISC + 512
L_GW = L_MISC + 1024
L_KT = 146432; L_VT = L_KT + 9216
L_SCR = 147456
L_Y = 65536
L_MB = L_MISC + 2048
L_GS = L_MB + 3072
L_Q = 73728; L_OWN = L_Q + 8192
L_WO = 0; L_O = 98304
LOG2E = math.log2(math.e)
def f32(x): return "0x%08x" % struct.unpack("<I", struct.pack("<f", x))[0]

SX, SW, SWO, SK, SV, SH, SWS, SOUT = 4, 8, 12, 16, 20, 24, 28, 32
srd = lambda b: f"s[{b}:{b+3}]"
sWAVE, sRB, sHG, sCG, sTB, sLOC = "s36", "s37", "s38", "s39", "s40", "s41"
sNON = "s[42:43]"
sHEAD, sQT, sK0, sF1P, sOOFF, sF2, sF4, sWOG, sWOL, sROT, sKVB, sFH = "s53", "s54", "s55", "s56", "s57", "s58", "s59", "s62", "s63", "s90", "s94", "s95"
VMASK, ONES = "s[60:61]", "s[100:101]"
P_X, P_W, P_WO, P_K, P_V, P_SK, P_H, P_D, P_GW, P_OUT, P_DBG, P_WS = 64, 66, 68, 72, 74, 76, 78, 80, 82, 84, 86, 88
pp = lambda p: f"s[{p}:{p+1}]"

A = Asm()
STN = {}
for i, n in enumerate("start ptrs kvland bk predone p0 b0 p1 b1 p2 b2 p3 b3 p4 b4 p5 b5 f3seen p6 b6 p7 b7 kvend pa ba f1pub pw bw pw2 bw2 f1a qend f1b bq f1seen own cs0 cs1 cs2 convend lsync ydone att0 attend bx ost f2seen bf bf2 ylate mmend end".split()):
    STN[n] = i
LITE = "start bk b0 b4 b7 kvend ba f1pub pw bw pw2 bw2 qend bq own cs0 cs1 cs2 convend lsync ydone att0 attend bx ost f2seen bf bf2 mmend end f1seen".split()
def stamp(name):
    if OPT.get("echo") == name:
        A("s_memrealtime s[98:99]\ns_waitcnt lgkmcnt(0)\ns_sub_u32 s97, s98, s96")
    if not OPT["stamps"]: return
    if OPT["stamps"] == 2 and (name in ("b1", "b2", "b3", "b5", "b6", "ptrs") or (name[0] == "p" and name[1].isdigit())): return
    if OPT["stamps"] == 3 and name not in LITE: return
    if name == "start":
        A(f"s_waitcnt lgkmcnt(0)\ns_memtime s[98:99]\ns_mov_b32 s97, {STN[name]}")
    else:
        A(f"s_bfm_b64 exec, 1, s97\nv_mov_b32 v2, s98\ns_mov_b64 exec, -1\ns_memtime s[98:99]\ns_mov_b32 s97, {STN[name]}")
    if name == "end": A(f"s_waitcnt lgkmcnt(0)\nv_writelane_b32 v2, s98, {STN[name]}")

def mksrd(b, p, size):
    A(f"s_mov_b32 s{b}, s{p}\ns_and_b32 s{b+1}, s{p+1}, 0xffff\ns_mov_b32 s{b+2}, {size}\ns_mov_b32 s{b+3}, 0x20000")
def vr(b, n): return f"v[{b}:{b+n-1}]"
def lines(t): return [l.strip() for l in t.split("\n") if l.strip()]
MF32 = "v_mfma_f32_32x32x16_bf16"; MF16 = "v_mfma_f32_16x16x32_bf16"

def take_nonce(vt):
    l = A.lab("NON"); d = A.lab("NOND")
    A(f"""
    s_mov_b32 s44, {OPT['spin']}
    {l}:
    v_readfirstlane_b32 s42, v{vt}
    v_readfirstlane_b32 s43, v{vt+1}
    s_cmp_lg_u32 s42, 0
    s_cbranch_scc1 {d}
    global_load_dwordx2 {vr(vt,2)}, v{vt+2}, {pp(P_DBG)} sc1
    s_waitcnt vmcnt(0)
    s_sub_u32 s44, s44, 1
    s_cbranch_scc0 {l}
    {d}:
    """)
def poll(soff, vt, vaddr, preloaded=False, hello=False):
    l = A.lab("POLL"); d = A.lab("POLLD"); c = A.lab("POLLC")
    A(f"s_mov_b32 s44, {OPT['spin']}")
    if preloaded: A(f"s_branch {c}")
    A(f"""
    {l}:
    buffer_load_dwordx2 {vr(vt,2)}, v{vaddr}, {srd(SWS)}, {soff} offen sc1
    s_waitcnt vmcnt(0)
    {c}:
    """)
    if hello:
        A(f"v_xor_b32 v{vt+1}, s43, v{vt+1}\nv_cmp_ne_u32 vcc, s42, v{vt}\nv_and_b32 v{vt}, 0x0fffffff, v{vt+1}\nv_cmp_ne_u32 s[50:51], 0, v{vt}\ns_or_b64 vcc, vcc, s[50:51]")
    else:
        A(f"v_cmp_ne_u64 vcc, {sNON}, {vr(vt,2)}")
    A(f"""
    s_sub_u32 s44, s44, 1
    s_cbranch_scc1 {d}
    s_cbranch_vccnz {l}
    {d}:
    """)
def flag_store(soff, vt, cache="sc1", hi="s43"):
    A(f"""
    v_mov_b32 v{vt}, s42
    v_mov_b32 v{vt+1}, {hi}
    v_mov_b32 v{vt+2}, 0
    s_mov_b64 exec, 1
    buffer_store_dwordx2 {vr(vt,2)}, v{vt+2}, {srd(SWS)}, {soff} offen {cache}
    s_mov_b64 exec, -1
    """)
def lds_wait(vaddr, vt, val):
    l = A.lab("LW"); d = A.lab("LWD")
    A(f"""
    s_mov_b32 s44, {OPT['spin']}
    s_branch {l}c
    {l}:
    s_sleep {OPT['slp']}
    {l}c:
    ds_read_b32 v{vt}, v{vaddr}
    s_waitcnt lgkmcnt(0)
    v_readfirstlane_b32 s45, v{vt}
    s_sub_u32 s44, s44, 1
    s_cbranch_scc1 {d}
    s_cmp_lt_u32 s45, {val}
    s_cbranch_scc1 {l}
    {d}:
    """)
def hello_check(vt):
    if not OPT["local"]: return
    poll(sFH, vt, vt + 2, preloaded=True, hello=True)
    A(f"""
    s_getreg_b32 s48, hwreg(HW_REG_XCC_ID, 0, 4)
    s_lshl_b32 s48, s48, 28
    v_cmp_ne_u32 vcc, s48, v{vt+1}
    s_cmp_eq_u64 vcc, 0
    s_cselect_b32 {sLOC}, {1 if OPT['local'] == 1 else 0}, 0
    """)
NLL = 1 if OPT["local"] else 0
def late_loads(vt):
    if not OPT["local"]: return
    A(f"""
    v_and_b32 v{vt+2}, 7, v1
    v_lshlrev_b32 v{vt+2}, 7, v{vt+2}
    buffer_load_dwordx2 {vr(vt,2)}, v{vt+2}, {srd(SWS)}, {sFH} offen sc1
    """)
def build_mask(base, far, vz, vinf):
    out = [f"v_mov_b32 v{vz}, 0", f"v_mov_b32 v{vinf}, 0xff800000"]
    for r in range(16):
        m = 8 * (r >> 2) + (r & 3)
        lo, hi = (0xFFFFFFFF << m) & 0xFFFFFFFF, (0xFFFFFFFF << (m + 4)) & 0xFFFFFFFF
        sp = 48 + 2 * (r & 1)
        out += [f"s_mov_b32 s{sp}, {hex(lo)}", f"s_mov_b32 s{sp+1}, {hex(hi)}"]
        out.append(f"v_cndmask_b32 v{base+r}, v{vz if far else vinf}, v{vinf if far else vz}, s[{sp}:{sp+1}]")
    return out

SPLIT = OPT["split"]
QF = [120, 124]; S = [16, 32]; P = 48; O = [56, 128]; VH = 144
VL16 = 211; MK = 212; VF = [228, 236]; KF = [244, 248]; VKA, VVA, VWOA, VT3 = 252, 253, 254, 255
VF1A = 7
def ones(base): return [f"v_mov_b64 {vr(base+i,2)}, {ONES}" for i in range(0, 8, 2)]
def att_setup(far, t0, t1):
    A(f"""
    s_and_b32 {sHEAD}, {sWAVE}, 3
    s_lshr_b32 {sQT}, {sWAVE}, 2
    s_mov_b32 s60, 0x0000ffff
    s_mov_b32 s61, 0x0000ffff
    s_mov_b32 s100, 0x3f803f80
    s_mov_b32 s101, 0x3f803f80
    v_and_b32 v{VVA}, 15, v1
    v_lshlrev_b32 v{VVA}, 4, v{VVA}
    v_lshrrev_b32 v{t0}, 5, v1
    v_lshl_add_u32 v{VVA}, v{t0}, 8, v{VVA}
    v_add_u32 v{VVA}, 1024, v{VVA}
    s_lshl_b32 s45, {sHEAD}, 12
    s_add_u32 s45, s45, {L_X}
    v_add_u32 v{VKA}, s45, v{VL16}
    v_lshrrev_b32 v{VWOA}, 3, v1
    v_lshlrev_b32 v{VWOA}, 10, v{VWOA}
    v_lshrrev_b32 v{t0}, 2, v1
    v_and_b32 v{VF1A}, 3, v{t0}
    v_and_b32 v{t0}, 4, v{t0}
    v_and_b32 v{t1}, 7, v1
    v_xor_b32 v{t0}, v{t0}, v{t1}
    v_lshl_add_u32 v{VWOA}, v{t0}, 4, v{VWOA}
    s_lshl_b32 s48, {sHEAD}, 11
    s_mul_i32 s45, {sHEAD}, 768
    s_add_u32 s45, s45, {L_MB}
    v_mov_b32 v{VT3}, s45
    s_max_u32 s45, {sRB}, 1
    s_sub_u32 s45, s45, 1
    v_min_u32 v{VF1A}, s45, v{VF1A}
    v_sub_u32 v{VF1A}, 3, v{VF1A}
    v_lshlrev_b32 v{VF1A}, 5, v{VF1A}
    v_and_b32 v{t1}, 3, v1
    v_lshl_add_u32 v{VF1A}, v{t1}, 3, v{VF1A}
    s_lshl_b32 s49, {sHG}, 5
    s_add_u32 s49, s49, {sRB}
    s_lshl_b32 s45, s49, 5
    s_add_u32 {sF1P}, s45, {F1 - 128}
    s_lshl_b32 {sKVB}, s49, 14
    s_add_u32 {sKVB}, {sKVB}, s48
    s_add_u32 {sKVB}, {sKVB}, {WS_KV}
    s_lshl_b32 {sK0}, {sRB}, 1
    s_sub_u32 {sK0}, 8, {sK0}
    s_max_i32 {sK0}, {sK0}, 0
    ; o goes into this workgroup's own (already consumed) rows of the ur array: [rb][hg][wave][1KB]
    s_lshl_b32 {sOOFF}, {sRB}, 3
    s_add_u32 {sOOFF}, {sOOFF}, {sHG}
    s_lshl_b32 {sOOFF}, {sOOFF}, 3
    s_add_u32 {sOOFF}, {sOOFF}, {sWAVE}
    s_lshl_b32 {sOOFF}, {sOOFF}, 10
    s_add_u32 {sOOFF}, {sOOFF}, {WS_UR}
    s_lshl_b32 {sF2}, {sRB}, 10
    s_add_u32 {sF2}, {sF2}, {F2}
    s_add_u32 {sFH}, {sF2}, 64
    s_lshl_b32 {sWOG}, {sWAVE}, 16
    s_lshl_b32 s45, {sHG}, 7
    s_add_u32 {sWOG}, {sWOG}, s45
    s_lshl_b32 {sWOL}, {sWAVE}, 13
    """)
    mksrd(SWO, P_WO, 0x80000)
    for l in build_mask(MK, far, t0, t1) + ones(VF[0]) + ones(VF[1]): A(l)
def tile_loads(kap, kreg, vreg):
    return [f"s_sub_u32 s45, {sKVB}, {(8-kap)*8192}\nbuffer_load_dwordx4 {vr(kreg,4)}, v{VL16}, {srd(SWS)}, s45 offen sc1",
            f"s_sub_u32 s45, {sKVB}, {(8-kap)*8192}\ns_mov_b64 exec, {VMASK}\nbuffer_load_dwordx4 {vr(vreg,4)}, v{VVA}, {srd(SWS)}, s45 offen sc1\n"
            f"buffer_load_dwordx4 {vr(vreg+4,4)}, v{VVA}, {srd(SWS)}, s45 offen offset:512 sc1\ns_mov_b64 exec, -1"]
def wo_dma(i):
    A(f"s_add_u32 m0, {sWOL}, {L_WO + 1024*i}\ns_add_u32 s45, {sWOG}, {8192*i}\nbuffer_load_dwordx4 v{VWOA}, {srd(SWO)}, s45 offen lds")
def f1_pre(): A(f"buffer_load_dwordx2 v[4:5], v{VF1A}, {srd(SWS)}, {sF1P} offen sc1")

def att_run(items, regs, hooks, exit_label):
    seen = set(); first_o = [True, True]
    def smm(i):
        k, qt, m = items[i]
        if k not in seen:
            seen.add(k)
            if ('k', k) in hooks: hooks[('k', k)]()
        A(f"{MF32} {vr(S[i&1],16)}, {vr(regs[k][0],4)}, {vr(QF[qt],4)}, {vr(MK,16) if m else '0'}")
    smm(0)
    for i, (k, qt, m) in enumerate(items):
        sb = S[i & 1]; vb = regs[k][1]
        late = i + 1 < len(items) and items[i + 1][0] not in seen and ('k', items[i + 1][0]) in hooks
        if i + 1 < len(items) and not late: smm(i + 1)
        if ('i', i) in hooks: hooks[('i', i)]()
        for e in range(8): A(f"v_exp_f32 v{sb+e}, v{sb+e}")
        for e in range(4): A(f"v_cvt_pk_bf16_f32 v{P+e}, v{sb+2*e}, v{sb+2*e+1}")
        for e in range(8, 10): A(f"v_exp_f32 v{sb+e}, v{sb+e}")
        c = '0' if first_o[qt] else vr(O[qt], 16); first_o[qt] = False
        A(f"{MF32} {vr(O[qt],16)}, {vr(vb,4)}, {vr(P,4)}, {c}")
        if ('m', i) in hooks: hooks[('m', i)]()
        for e in range(10, 12): A(f"v_exp_f32 v{sb+e}, v{sb+e}")
        if late: smm(i + 1)
        for e in range(12, 16): A(f"v_exp_f32 v{sb+e}, v{sb+e}")
        for e in range(4, 8): A(f"v_cvt_pk_bf16_f32 v{P+e}, v{sb+2*e}, v{sb+2*e+1}")
        lastofk = i + 1 == len(items) or items[i + 1][0] != k
        ex = lastofk and i + 1 < len(items) and k % 2 == 0
        if ex: A(f"s_cmp_eq_u32 {sK0}, {k}")
        A(f"{MF32} {vr(O[qt],16)}, {vr(vb+4,4)}, {vr(P+4,4)}, {vr(O[qt],16)}")
        if ex: A(f"s_cbranch_scc1 {exit_label(i + 1)}")
def exchange(qt):
    so, ro = (0, 2048) if qt == 0 else (2048, 0)
    A(f"""
    v_lshl_add_u32 v25, v1, 2, v{VT3}
    ds_write_b128 v{VKA}, {vr(O[1-qt],4)} offset:{so}
    ds_write_b128 v{VKA}, {vr(O[1-qt]+4,4)} offset:{so+1024}
    ds_write_b32 v25, v{O[1-qt]+8} offset:{256 + 256*qt}
    s_waitcnt vmcnt(0) lgkmcnt(0)
    s_barrier
    """)
    stamp("bx")
    A(f"""
    ds_read_b32 v24, v25 offset:{512 - 256*qt}
    ds_read_b128 v[16:19], v{VKA} offset:{ro}
    ds_read_b128 v[20:23], v{VKA} offset:{ro+1024}
    s_mov_b32 s45, {f32(2.0**-30)}
    s_mov_b32 s48, {f32(2.0**30)}
    s_waitcnt lgkmcnt(2)
    v_add_f32 v{O[0]+8}, v{O[qt]+8}, v24
    v_rcp_f32 v{O[0]+10}, v{O[0]+8}
    v_cmp_nlt_f32 vcc, s45, v{O[0]+8}
    v_cmp_ngt_f32 s[50:51], s48, v{O[0]+8}
    s_waitcnt lgkmcnt(0)
    """)
    for i in range(0, 8, 2): A(f"v_pk_add_f32 {vr(O[0]+i,2)}, {vr(O[qt]+i,2)}, {vr(16+i,2)}")

A(f"""
s_cmp_ge_u32 s2, 256
s_cbranch_scc1 L_END
s_load_dwordx16 s[64:79], s[0:1], 0
s_load_dwordx8 s[80:87], s[0:1], 64
s_load_dwordx2 s[88:89], s[0:1], 96
s_memrealtime s[46:47]
v_lshrrev_b32 v3, 6, v0
v_and_b32 v1, 63, v0
v_readfirstlane_b32 {sWAVE}, v3
v_mov_b32 v2, 0
s_and_b32 {sCG}, s2, 7
s_lshr_b32 {sTB}, s2, 3
s_lshl_b32 {sRB}, {sCG}, 2
s_lshr_b32 s44, s2, 6
s_add_u32 {sRB}, {sRB}, s44
s_and_b32 {sHG}, {sTB}, 7
s_add_u32 {sROT}, {sHG}, {sCG}
s_and_b32 {sROT}, {sROT}, 7
v_lshrrev_b32 v8, 3, v1
v_and_b32 v9, 7, v1
v_lshlrev_b32 v{VL16}, 4, v1
""")
if OPT["cpf"]:
    A(f"""
    s_getpc_b64 s[92:93]
    s_lshl_b32 s44, {sTB}, 3
    s_add_u32 s44, s44, {sWAVE}
    s_lshl_b32 s44, s44, 7
    s_min_u32 s44, s44, {OPT['span']}
    v_mov_b32 v3, s44
    global_load_dword v3, v3, s[92:93]
    """)
A(f"""
s_cmp_ge_u32 {sWAVE}, 4
s_cbranch_scc1 L_LOADER
""")
stamp("start")
gHP, gRT, gKVS, gWQG, gWQL, gUS, gF3, gF1, gXI, gOK = "s4", "s5", "s6", "s7", "s24", "s25", "s26", "s27", "s52", "s91"
VXA, VXB, VWA, VWB, VQA = 200, 204, 208, 209, 210
VWQ, VST, VNON, VPF = 244, 245, 246, 249
VUS, VTR, VSK = 136, 137, 138
A(f"""
v_lshlrev_b32 v10, 10, v8
v_lshl_add_u32 v10, v9, 4, v10
s_lshl_b32 s44, {sTB}, 16
s_lshl_b32 s45, {sCG}, 7
s_add_u32 s44, s44, s45
v_add_u32 v10, s44, v10
v_subrev_u32 v11, 8192, v10
v_and_b32 v14, 15, v1
s_lshl_b32 s44, {sCG}, 6
s_lshl_b32 s45, {sWAVE}, 4
s_add_u32 s50, s44, s45
v_add_u32 v15, s50, v9
v_lshlrev_b32 v12, 3, v15
s_lshl_b32 s45, {sWAVE}, 14
s_lshl_b32 {gWQL}, {sWAVE}, 11
s_add_u32 m0, {gWQL}, {L_KT + 1024}
s_add_u32 s49, s45, 8192
s_waitcnt lgkmcnt(0)
""")
if OPT.get("echo"): A("s_mov_b32 s96, s46\ns_mov_b32 s97, 0")
stamp("ptrs")
mksrd(SK, P_K, 0x200000)
A(f"buffer_load_dwordx4 v10, {srd(SK)}, s45 offen lds\ns_add_u32 m0, {gWQL}, {L_KT + 2048}")
mksrd(SV, P_V, 0x200000)
A(f"""
buffer_load_dwordx4 v10, {srd(SK)}, s49 offen lds
s_add_u32 m0, {gWQL}, {L_VT}
s_nop 0
buffer_load_dwordx4 v10, {srd(SV)}, s45 offen lds
s_add_u32 m0, {gWQL}, {L_VT + 1024}
s_cmp_eq_u32 {sWAVE}, 2
buffer_load_dwordx4 v10, {srd(SV)}, s49 offen lds
s_cbranch_scc0 L_PFA
s_mov_b32 m0, {L_KT}
s_nop 0
buffer_load_dwordx4 v11, {srd(SK)}, 0 offen lds
L_PFA:
global_load_dwordx2 v[132:133], v12, {pp(P_SK)}
global_load_dwordx2 v[134:135], v12, {pp(P_SK)} offset:64
s_cmp_eq_u32 {sWAVE}, 0
s_cbranch_scc0 L_PFB
s_cmp_ge_u32 s2, 8
s_cbranch_scc1 L_PFB
s_or_b32 s46, s46, 1
v_mov_b32 v24, s46
v_mov_b32 v25, s47
v_mov_b32 v26, 0
v_mov_b32 v27, 0
s_mov_b64 exec, 1
global_atomic_cmpswap_x2 v26, v[24:27], {pp(P_DBG)} sc1
s_mov_b64 exec, -1
L_PFB:
s_cmp_eq_u32 {sWAVE}, 1
s_cbranch_scc0 L_PFC
s_lshl_b32 s45, {sROT}, 7
v_add_u32 v22, s45, v{VL16}
v_and_b32 v22, 1023, v22
s_mov_b32 m0, {L_GW}
s_nop 0
global_load_lds_dwordx4 v22, {pp(P_GW)}
L_PFC:
""")
HBLK = f"""
; h rows of this workgroup's two channels (aligned copy): wave w loads 2KB
s_lshl_b32 s44, {sCG}, 18
s_lshl_b32 s45, {sTB}, 13
s_add_u32 s44, s44, s45
s_add_u32 s44, s44, {gWQL}
v_add_u32 v22, s44, v{VL16}
s_lshr_b32 s45, {sWAVE}, 1
s_mul_i32 s45, s45, {2*HSTR - 4096}
s_add_u32 s45, s45, {gWQL}
s_add_u32 m0, s45, {L_H}
s_nop 0
global_load_lds_dwordx4 v22, {pp(P_H)}
global_load_lds_dwordx4 v22, {pp(P_H)} offset:1024
; wave 3: lines of W with (addr>>7)&7 == 3; wave 2: a share of W_q; wave 1: a share of wo and its slow lines
v_min_u32 v19, 47, v1
v_lshlrev_b32 v19, 10, v19
s_mul_i32 s48, {sTB}, {48*1024}
s_add_u32 s48, s48, 384
v_add_u32 v19, s48, v19
v_and_b32 v20, 1, v8
v_mul_u32_u24 v20, 3072, v20
v_lshl_add_u32 v20, v9, 7, v20
s_mul_i32 s48, s2, 6144
v_add_u32 v20, s48, v20
s_cmp_eq_u32 {sWAVE}, 2
s_cselect_b64 vcc, -1, 0
v_cndmask_b32 v19, v19, v20, vcc
s_lshl_b32 s48, s2, 11
v_lshl_add_u32 v20, v14, 7, s48
s_lshl_b32 s48, {sTB}, 14
s_add_u32 s48, s48, 384
v_lshl_add_u32 v21, v14, 10, s48
v_cmp_gt_u32 vcc, 32, v1
s_cmp_eq_u32 {sWAVE}, 1
s_cselect_b32 s48, s{P_WO}, s{P_W}
s_cselect_b32 s49, s{P_WO+1}, s{P_W+1}
v_cndmask_b32 v20, v20, v21, vcc
s_cselect_b64 vcc, -1, 0
v_cndmask_b32 v19, v19, v20, vcc
s_bitcmp1_b32 {OPT.get('pfm', 14)}, {sWAVE}
s_cselect_b64 exec, -1, 1
global_load_dword v{VPF}, v19, s[48:49]
s_mov_b64 exec, -1
"""
if not OPT["hlate"]: A(HBLK)
A(f"""
s_and_b32 {gHP}, {sWAVE}, 1
s_lshr_b32 {gRT}, {sWAVE}, 1
""")
mksrd(SWS, P_WS, WS_SIZE); mksrd(SW, P_W, 0x180000)
A(f"""
v_and_b32 v16, 31, v1
v_mov_b32 v{VNON+2}, 0
v_lshrrev_b32 v23, 5, v1             ; hh
v_lshrrev_b32 v34, 4, v16
v_mul_u32_u24 v34, 6144, v34
v_lshl_add_u32 v34, v14, 7, v34
s_mul_i32 s45, {gRT}, 12288
v_add_u32 v34, s45, v34
v_lshrrev_b32 v35, 1, v14
v_xor_b32 v35, v35, v23
""")
for s_ in range(4):
    A(f"v_xor_b32 v36, {2*s_}, v35\nv_lshl_add_u32 v{VXA+s_}, v36, 4, v34\nv_add_u32 v{VXB+s_}, 49152, v{VXA+s_}")
A(f"""
v_lshrrev_b32 v36, 2, v1
v_and_b32 v36, 3, v36                ; r
v_lshrrev_b32 v37, 1, v36
v_xor_b32 v37, {gHP}, v37
v_lshlrev_b32 v37, 6, v37
v_lshl_add_u32 v37, v36, 7, v37
v_lshrrev_b32 v28, 4, v1             ; g
v_and_b32 v29, 1, v28
v_lshl_add_u32 v37, v29, 5, v37
v_and_b32 v30, 3, v1                 ; c'
v_lshl_add_u32 v37, v30, 3, v37
v_lshl_add_u32 v{VQA}, v23, 10, v37
v_lshl_add_u32 v37, v23, 11, v37
v_add_u32 v{VWA}, 2048, v37
v_add_u32 v{VWB}, {2048 + 49152}, v37
v_lshl_add_u32 v37, v28, 3, v36
v_lshrrev_b32 v13, 1, v30
v_lshl_add_u32 v37, v13, 5, v37
v_lshlrev_b32 v37, 7, v37
v_and_b32 v13, 1, v1
v_lshl_add_u32 v37, v13, 3, v37
s_lshl_b32 s45, {sWAVE}, 5
s_add_u32 s45, s45, {L_KT}
v_add_u32 v{VTR}, s45, v37
v_lshlrev_b32 v12, 12, v15
v_and_b32 v13, 1, v8
v_lshl_add_u32 v13, v13, 2, v28      ; octet = g + 4*((l>>3)&1)
v_lshlrev_b32 v13, 4, v13
v_sub_u32 v12, v12, v13
v_add_u32 v{VUS}, 112, v12
s_lshl_b32 s45, {sTB}, 7
s_sub_u32 {gUS}, {WS_UR + 4080 - 112}, s45
v_lshlrev_b32 v31, 2, v29
v_xor_b32 v31, v9, v31
v_mul_u32_u24 v{VWQ}, 3072, v8
v_lshl_add_u32 v{VWQ}, v31, 4, v{VWQ}
""")
if OPT["hlate"]: A(HBLK)
att_setup(False, 38, 39)
A(f"""
v_lshl_add_u32 v{VST}, v29, 11, v{VVA}
s_lshl_b32 s49, {sHG}, 5
s_add_u32 s49, s49, {sRB}
s_lshl_b32 {gF1}, s49, 2
s_add_u32 {gF1}, {gF1}, {sWAVE}
s_lshl_b32 {gF1}, {gF1}, 3
s_add_u32 {gF1}, {gF1}, {F1}
s_lshl_b32 s45, {gRT}, 13
s_lshl_b32 s48, {gHP}, 12
s_add_u32 s45, s45, s48
s_lshl_b32 {gKVS}, s49, 14
s_add_u32 {gKVS}, {gKVS}, s45
s_add_u32 {gKVS}, {gKVS}, {WS_KV}
s_add_u32 s49, s45, {L_OWN}
v_add_u32 v4, s49, v{VL16}
v_add_u32 v5, s49, v{VST}
s_lshr_b32 s45, s45, 1
s_add_u32 s45, s45, {L_Q}
v_add_u32 v6, s45, v{VL16}
s_mul_i32 {gWQG}, {sWAVE}, 49152
s_lshl_b32 s45, {sHG}, 7
s_add_u32 {gWQG}, {gWQG}, s45
s_lshl_b32 {gF3}, {sCG}, 2
s_add_u32 {gF3}, {gF3}, {sWAVE}
s_lshl_b32 {gF3}, {gF3}, 5
s_add_u32 {gF3}, {gF3}, {sTB}
s_lshl_b32 {gF3}, {gF3}, 3
s_add_u32 {gF3}, {gF3}, {F3}
s_sub_u32 {gXI}, 8, {sCG}
s_and_b32 {gXI}, {gXI}, 7
s_lshl_b32 {gXI}, {gXI}, 4
s_lshl_b32 s45, {gHP}, 3
s_add_u32 {gXI}, {gXI}, s45
s_mov_b32 {sF4}, {sF1P}
s_lshl_b32 s45, {gRT}, 7
s_add_u32 s45, s45, {L_Z}
v_lshl_add_u32 v250, v16, 2, s45
s_waitcnt vmcnt(3)
""")
stamp("kvland")
for i in range(4): A(f"v_alignbit_b32 v{VSK+i}, v{132+i}, v{132+i}, 16")
A("s_barrier")
stamp("bk")
XF = lambda kk: 72 + 4 * kk
for o in range(2):
    kb, vb = 144 + 10 * o, 150 + 10 * o
    for q in range(3): A(f"ds_read_b64_tr_b16 {vr(kb+2*q,2)}, v{VTR} offset:{o*16 + (4+4*q)*128}")
    for q in range(2): A(f"ds_read_b64_tr_b16 {vr(vb+2*q,2)}, v{VTR} offset:{9216 + o*16 + 4*q*128}")
for o in range(2):
    kb, vb = 144 + 10 * o, 150 + 10 * o
    K0, V0, U0 = 164, 176, 184
    A(f"s_waitcnt lgkmcnt({5 - 5*o})")
    for i in range(5): A(f"v_alignbit_b32 v{K0+i}, v{kb+i+1}, v{kb+i}, 16")
    src = lambda t, far: (kb + (t + 3) // 2 - far) if t % 2 else (K0 + t // 2 + 1 - far)
    for t in range(8): A(f"v_dot2_f32_bf16 v{U0+t}, v{src(t,0)}, v{VSK+2*o}, 0")
    for t in range(8): A(f"v_dot2_f32_bf16 v{U0+t}, v{src(t,1)}, v{VSK+2*o+1}, v{U0+t}")
    for e in range(8):
        A(f"v_lshlrev_b32 v{V0+e}, 16, v{vb+e//2}" if e % 2 == 0 else f"v_and_b32 v{V0+e}, 0xffff0000, v{vb+e//2}")
    for t in range(0, 8, 2): A(f"v_pk_mul_f32 {vr(U0+t,2)}, {vr(U0+t,2)}, {vr(V0+t,2)}")
    ob = 192 + 4 * o
    for d in range(4): A(f"v_cvt_pk_bf16_f32 v{ob+d}, v{U0+7-2*d}, v{U0+6-2*d}")
A(f"s_add_u32 s45, {gUS}, 32768")
for o in range(2):
    A(f"buffer_store_dwordx4 {vr(192+4*o,4)}, v{VUS}, {srd(SWS)}, {'s45' if o else gUS} offen sc1")
A(f"global_load_dwordx2 {vr(VNON,2)}, v{VNON+2}, {pp(P_DBG)} sc1")
A("s_waitcnt vmcnt(4)")
stamp("predone")

AK, AV = 8, 24
WF = lambda s_: 40 + 8 * s_
def gemm_reads(c, s_):
    sl = SLOTS[c]
    xa, wa, o = (VXA + s_, VWA, sl) if sl < 49152 else (VXB + s_, VWB, sl - 49152)
    r = [f"ds_read_b128 {vr(XF(4*c+s_),4)}, v{xa} offset:{o}"]
    for sec in range(2):
        for half in range(2):
            r.append(f"ds_read_b64_tr_b16 {vr(WF(s_)+4*sec+2*half,2)}, v{wa} offset:{o + s_*6144 + sec*1024 + half*512}")
    return r
def gemm_ms(c, s_):
    first = (c == 0 and s_ == 0)
    x = vr(XF(4*c+s_), 4)
    return [f"{MF32} {vr(AK,16)}, {vr(WF(s_),4)}, {x}, {'0' if first else vr(AK,16)}",
            f"{MF32} {vr(AV,16)}, {x}, {vr(WF(s_)+4,4)}, {'0' if first else vr(AV,16)}"]
for c in range(8):
    stamp(f"p{c}"); A("s_barrier"); stamp(f"b{c}")
    R = sum((gemm_reads(c, s_) for s_ in range(4)), [])
    km = [gemm_ms(c, s_) for s_ in range(4)]
    for r in R[:10]: A(r)
    A("s_waitcnt lgkmcnt(5)"); A(km[0][0])
    for r in R[10:13]: A(r)
    A(km[0][1])
    for r in R[13:16]: A(r)
    A("s_waitcnt lgkmcnt(6)"); A(km[1][0])
    for r in R[16:18]: A(r)
    A(km[1][1])
    for r in R[18:20]: A(r)
    A("s_waitcnt lgkmcnt(5)"); A(km[2][0])
    if c < 7:
        A(km[2][1])
        if c == OPT["f3c"]:
            A("s_waitcnt vmcnt(0)")
            take_nonce(VNON)
            flag_store(gF3, VNON)
            if OPT["local"]:
                A(f"""
                s_cmp_lg_u32 {sWAVE}, 3
                s_cbranch_scc1 L_NOHELLO
                s_getreg_b32 s48, hwreg(HW_REG_XCC_ID, 0, 4)
                s_lshl_b32 s48, s48, 28
                s_xor_b32 s48, s48, s43
                s_lshl_b32 s45, {sHG}, 7
                s_add_u32 s45, s45, {sFH}
                """)
                flag_store("s45", VNON, hi="s48")
                A("L_NOHELLO:")
        A("s_waitcnt lgkmcnt(0)"); A(km[3][0]); A(km[3][1])
    else:
        A("s_waitcnt lgkmcnt(2)"); A(km[3][0]); A(km[2][1]); A("s_waitcnt lgkmcnt(0)"); A(km[3][1])
KP = 56
for i in range(8): A(f"v_cvt_pk_bf16_f32 v{KP+i}, v{AK+2*i}, v{AK+2*i+1}")
A(f"buffer_store_dwordx4 {vr(KP,4)}, v{VL16}, {srd(SWS)}, {gKVS} offen sc1")
A(f"buffer_store_dwordx4 {vr(KP+4,4)}, v{VL16}, {srd(SWS)}, {gKVS} offen offset:2048 sc1")
for i in range(8): A(f"v_cvt_pk_bf16_f32 v{KP+8+i}, v{AV+2*i}, v{AV+2*i+1}")
A(f"buffer_store_dwordx4 {vr(KP+8,4)}, v{VST}, {srd(SWS)}, {gKVS} offen sc1")
A(f"buffer_store_dwordx4 {vr(KP+12,4)}, v{VST}, {srd(SWS)}, {gKVS} offen offset:512 sc1")
stamp("kvend")
LQ = OPT["lq"]; G1 = OPT["g1"]; NA = LQ + G1
def g_wq(lc):
    A(f"""
    s_add_u32 s45, {sROT}, {lc}
    s_and_b32 s45, s45, 7
    s_mul_i32 s48, s45, 196608
    s_add_u32 s48, s48, {gWQG}
    s_add_u32 m0, {gWQL}, {lc*8192}
    s_add_u32 s50, s48, 24576
    buffer_load_dwordx4 v{VWQ}, {srd(SW)}, s48 offen lds
    s_add_u32 m0, {gWQL}, {lc*8192 + 1024}
    s_nop 0
    buffer_load_dwordx4 v{VWQ}, {srd(SW)}, s50 offen lds
    """)
stamp("pa")
A("s_barrier")
stamp("ba")
for lc in range(LQ, NA): g_wq(lc)
XK = 200
A(f"s_set_gpr_idx_on {gXI}, gpr_idx(SRC0)\ns_nop 1")
for i in range(8): A(f"v_mov_b32 v{XK+i}, v{XF(0)+i}")
A(f"""
s_set_gpr_idx_off
ds_read_b32 v208, v250
ds_read_b32 v209, v250 offset:256
ds_write_b128 v4, {vr(KP,4)}
ds_write_b128 v4, {vr(KP+4,4)} offset:2048
ds_write_b128 v5, {vr(KP+8,4)}
ds_write_b128 v5, {vr(KP+12,4)} offset:512
s_waitcnt vmcnt({2*G1})
""")
flag_store(gF1, VNON)
stamp("f1pub")
for lc in range(NA, 8): g_wq(lc)
for i in range(4): A(f"v_permlane32_swap_b32 v{XK+i}, v{XK+4+i}")
A(f"""
s_mov_b32 s48, {f32(-LOG2E)}
s_waitcnt lgkmcnt(0)
v_add_f32 v208, v208, v209
v_mul_f32 v208, s48, v208
v_exp_f32 v208, v208
v_mov_b32 v209, {L_GS}
v_add_f32 v208, 1.0, v208
v_mov_b32 v250, 1
v_rcp_f32 v208, v208
s_mov_b64 exec, 1
s_waitcnt vmcnt({1 + 2*(8-NA)})
ds_add_u32 v209, v250
s_mov_b64 exec, -1
""")
stamp("pw")
lds_wait(209, 251, 4)
stamp("bw")
AQ = 8
QW = lambda i: 24 + 4 * (i % 8)
LA = 6
GT = {k: (72 + 12 * i, 76 + 12 * i) if i < 4 else (148, 152) for i, k in enumerate(range(7, SPLIT - 1, -1))}
def qpart(k0, k1, hooks):
    def qread(kk):
        A(f"ds_read_b64_tr_b16 {vr(QW(kk),2)}, v{VQA} offset:{kk*2048}\nds_read_b64_tr_b16 {vr(QW(kk)+2,2)}, v{VQA} offset:{kk*2048+512}")
    for kk in range(k0, k0 + LA): qread(kk)
    if 'top' in hooks: hooks['top']()
    for kk in range(k0, k1):
        rem = min(LA - 1, k1 - 1 - kk)
        A(f"s_waitcnt lgkmcnt({2*rem})")
        A(f"{MF32} {vr(AQ,16)}, {vr(QW(kk),4)}, {vr(XF(kk),4)}, {'0' if kk == 0 else vr(AQ,16)}")
        if kk + LA < k1: qread(kk + LA)
        if kk in hooks: hooks[kk]()
qh = {OPT["f1p"]: f1_pre}
on = sum((ones(vv) for k, (kr, vv) in GT.items() if vv < 120), [])
for n in range(8): qh[4 * NA - 8 + n if 4 * NA - 8 + n != OPT["f1p"] else -1] = (lambda ls: (lambda: [A(x) for x in ls]))(on[2*n:2*n+2])
assert 4 * NA - 8 >= 12 and -1 not in qh
qpart(0, 4 * NA, qh)
A("s_mov_b64 exec, 1\ns_waitcnt vmcnt(1)\nds_add_u32 v209, v250\ns_mov_b64 exec, -1")
stamp("pw2")
lds_wait(209, 251, 8)
stamp("bw2")
gl = sum((tile_loads(k, kr, vv) for k, (kr, vv) in GT.items()), [])
def f1_look(name, again):
    l = A.lab("F1L")
    A(f"""
    s_waitcnt vmcnt(0)
    v_cmp_ne_u64 vcc, {sNON}, v[4:5]
    s_cmp_eq_u32 {sRB}, 0
    s_cselect_b64 vcc, 0, vcc
    s_mov_b32 {gOK}, 1
    s_cbranch_vccz {l}
    s_mov_b32 {gOK}, 0
    """)
    f1_pre()
    A(f"{l}:")
def cond(ls):
    def f():
        l = A.lab("CL")
        A(f"s_cmp_eq_u32 {gOK}, 0\ns_cbranch_scc1 {l}")
        for x in ls: A(x)
        A(f"{l}:")
    return f
F1A = OPT.get("f1a", 20)
def own_rd():
    A(f"""
    s_lshl_b32 s45, {sHEAD}, 11
    s_add_u32 s45, s45, {L_OWN}
    v_add_u32 v160, s45, v{VL16}
    v_add_u32 v161, s45, v{VVA}
    s_lshl_b32 s45, {sHEAD}, 10
    s_add_u32 s45, s45, {L_Q}
    v_add_u32 v162, s45, v{VL16}
    """)
    for t in (1, 0):
        A(f"ds_read_b128 {vr(KF[t],4)}, v160 offset:{t*8192}\ns_mov_b64 exec, {VMASK}\nds_read_b128 {vr(VF[t],4)}, v161 offset:{t*8192}\nds_read_b128 {vr(VF[t]+4,4)}, v161 offset:{t*8192+512}\ns_mov_b64 exec, -1")
NQC = OPT["nqc"]
qh = {F1A: lambda: f1_look("f1a", True), 31: own_rd}
for n in range(NQC): qh[F1A + 1 + n * (9 // max(NQC, 1))] = cond([gl[n]])
qpart(4 * NA, 32, qh)
stamp("qend")
A(f"s_mov_b32 s48, {f32(0.25 * LOG2E)}\ns_mov_b32 s49, s48")
for i in range(0, 16, 2): A(f"v_pk_mul_f32 {vr(AQ+i,2)}, {vr(AQ+i,2)}, s[48:49]")
for i in range(8): A(f"v_cvt_pk_bf16_f32 v{24+i}, v{AQ+2*i}, v{AQ+2*i+1}")
A(f"ds_write_b128 v6, v[24:27]\nds_write_b128 v6, v[28:31] offset:1024")
A(f"v_mov_b32 v33, 1\ns_mov_b64 exec, 1\ns_waitcnt lgkmcnt(0)\nds_add_u32 v209, v33\ns_mov_b64 exec, -1")
if len(gl) > 8:
    for l in ones(152): A(l)
lds_wait(209, 33, 12)
stamp("bq")
A(f"ds_read_b128 {vr(QF[1],4)}, v162 offset:4096\nds_read_b128 {vr(QF[0],4)}, v162\ns_waitcnt lgkmcnt(0)")
gitems = [(9, 1, 1), (8, 0, 1), (8, 1, 0)] + [(k, qt, 0) for k in range(7, SPLIT - 1, -1) for qt in (0, 1)]
gst = dict(wo=0)
def g_k(k):
    def f():
        A(f"s_waitcnt vmcnt({3*(k - SPLIT) + NLL + gst['wo']})")
        if k == 7: stamp("own")
    return f
def g_m(i):
    def f():
        left = len(gitems) - OPT["woe"] - i
        n = -(-(8 - gst["wo"]) // left) if left > 0 else 0
        for _ in range(n): wo_dma(gst["wo"]); gst["wo"] += 1
    return f
def g_rest():
    A(f"s_cmp_lg_u32 {gOK}, 0\ns_cbranch_scc1 L_F1HAVE\ns_waitcnt vmcnt(0)")
    poll(sF1P, 4, VF1A, preloaded=True)
    stamp("f1seen")
    for l in gl[:NQC]: A(l)
    A("L_F1HAVE:")
hooks = {('k', k): g_k(k) for k in GT}
rest = gl[NQC:]
slots = [('i', 0), ('m', 0), ('i', 1), ('m', 1), ('i', 2)]
per = -(-len(rest) // len(slots))
def mk(n):
    def f():
        if n == 0: g_rest()
        for l in rest[n*per:(n+1)*per]: A(l)
    return f
for n, sl in enumerate(slots): hooks[sl] = mk(n)
hooks[('m', 2)] = lambda: late_loads(VH)
for i in range(OPT["gw0"], len(gitems)): hooks[('m', i)] = g_m(i)
att_run(gitems, {9: (KF[1], VF[1]), 8: (KF[0], VF[0]), **GT}, hooks, lambda i: "L_GX")
assert gst["wo"] == 8
A("L_GDONE:\ns_waitcnt vmcnt(8)")
hello_check(VH)
stamp("attend")
exchange(0)
A("s_branch L_ATTFIN")

lLW, lKH, lCH, lXB, lWB, lBLK, lWQL, lYO, lURL, lHL, lF3, lD = "s16", "s17", "s18", "s19", "s20", "s21", "s22", "s23", "s32", "s33", "s34", "s35"
A("L_LOADER:")
stamp("start")
A(f"""
s_sub_u32 {lLW}, {sWAVE}, 4
v_lshrrev_b32 v10, 4, v1
v_xor_b32 v11, v9, v10
v_lshlrev_b32 v12, 10, v8
v_lshl_add_u32 v4, v11, 4, v12       ; x voffset i=0
v_xor_b32 v5, 64, v4
v_and_b32 v10, 1, v10
v_lshlrev_b32 v10, 2, v10
v_xor_b32 v10, v9, v10
v_mul_u32_u24 v6, 3072, v8
v_lshl_add_u32 v6, v10, 4, v6        ; W voffset
s_lshl_b32 {lXB}, {sRB}, 16
s_lshl_b32 s45, {lLW}, 14
s_add_u32 {lXB}, {lXB}, s45
s_mul_i32 {lWB}, {lLW}, 49152
s_lshl_b32 s45, {sHG}, 7
s_add_u32 {lWB}, {lWB}, s45
s_add_u32 {lWB}, {lWB}, 1024
s_mul_i32 {lBLK}, {lLW}, 6144
s_lshl_b32 {lWQL}, {lLW}, 11
s_waitcnt lgkmcnt(0)
""")
if OPT.get("echo"): A("s_mov_b32 s96, s46\ns_mov_b32 s97, 0")
stamp("ptrs")
mksrd(SX, P_X, 0x200000); mksrd(SW, P_W, 0x180000)
vq = []
def issue_chunk(c):
    sl = SLOTS[c]
    A(f"""
    s_lshl_b32 s45, {sROT}, 7
    s_add_u32 s45, s45, {lXB}
    s_mul_i32 s48, {sROT}, 196608
    s_add_u32 s48, s48, {lWB}
    s_add_u32 m0, {lBLK}, {sl}
    s_add_u32 s49, s45, 8192
    buffer_load_dwordx4 v4, {srd(SX)}, s45 offen lds
    s_add_u32 m0, {lBLK}, {sl+1024}
    s_add_u32 s50, s48, 24576
    buffer_load_dwordx4 v5, {srd(SX)}, s49 offen lds
    s_add_u32 m0, {lBLK}, {sl+2048}
    s_add_u32 {sROT}, {sROT}, 1
    buffer_load_dwordx4 v6, {srd(SW)}, s48 offen lds
    buffer_load_dwordx4 v6, {srd(SW)}, s48 offen offset:1024 lds
    s_add_u32 m0, {lBLK}, {sl+4096}
    s_and_b32 {sROT}, {sROT}, 7
    buffer_load_dwordx4 v6, {srd(SW)}, s50 offen lds
    buffer_load_dwordx4 v6, {srd(SW)}, s50 offen offset:1024 lds
    """)
    vq.extend([f"c{c}"] * 6)
def issue_q(lcs):
    for lc in lcs:
        A(f"""
        s_mul_i32 s48, {sROT}, 196608
        s_add_u32 s48, s48, {lWB}
        s_sub_u32 s48, s48, 1024
        s_add_u32 m0, {lWQL}, {lc*8192}
        s_add_u32 s50, s48, 24576
        buffer_load_dwordx4 v6, {srd(SW)}, s48 offen lds
        s_add_u32 m0, {lWQL}, {lc*8192 + 1024}
        s_add_u32 {sROT}, {sROT}, 1
        buffer_load_dwordx4 v6, {srd(SW)}, s50 offen lds
        s_and_b32 {sROT}, {sROT}, 7
        """)
        vq.extend(["q"] * 2)
def vwait(*tags):
    last = max(i for i, t in enumerate(vq) if t in tags)
    A(f"s_waitcnt vmcnt({len(vq) - 1 - last})")
issue_chunk(0)
VCA, VCG, VCD, VDA, VAD, VYS, VFL = 16, 201, 202, 203, 204, 208, 209
ZA, ZX, ZG, ZAD = 24, 40, 48, 56
A(f"""
v_mov_b32 v66, 0
s_and_b32 {lKH}, {lLW}, 1
s_lshr_b32 s52, {lLW}, 1             ; ch
s_lshl_b32 s45, {sCG}, 6
s_lshl_b32 s48, {sTB}, 1
s_add_u32 {lCH}, s45, s48
s_add_u32 {lCH}, {lCH}, s52
s_lshl_b32 s45, {lCH}, 1
v_mov_b32 v71, s45
global_load_ushort v71, v71, {pp(P_D)}
s_lshl_b32 s45, {lCH}, 12
s_lshl_b32 s48, {lKH}, 11
s_add_u32 {lYO}, s45, s48
s_mul_i32 s45, s52, {2*HSTR}
s_add_u32 s45, s45, s48
s_add_u32 s45, s45, {L_H}
v_add_u32 v62, s45, v{VL16}
""")
vq.append("d")
mksrd(SWS, P_WS, WS_SIZE)
A(f"""
v_and_b32 v10, 15, v1
v_lshrrev_b32 v11, 4, v1
v_and_b32 v12, 1, v11
v_mul_u32_u24 v27, {HSTR}, v12
v_lshl_add_u32 v27, v10, 2, v27
s_mul_i32 {lHL}, {lLW}, {HSTR}
s_add_u32 {lHL}, {lHL}, {L_H}
s_sub_u32 s49, {lHL}, 64
v_add_u32 v27, s49, v27
ds_write_b32 v27, v66
s_mul_i32 {lURL}, s52, {URSTR}
s_lshl_b32 s48, {lKH}, 8
s_add_u32 s45, {lURL}, s48
s_add_u32 s45, s45, {L_UR + 4096}
v_lshl_add_u32 v31, v1, 2, s45
ds_write_b32 v31, v66
s_lshl_b32 s45, {lLW}, 7
s_add_u32 {lD}, s45, {L_MISC}
v_lshl_add_u32 v31, v10, 2, {lD}
ds_write_b32 v31, v66
v_add_u32 v31, 1, v10                ; beta
v_and_b32 v67, 1, v31
v_mul_u32_u24 v67, {HSTR}, v67
v_and_b32 v68, 30, v31
v_lshl_add_u32 v68, v11, 3, v68
v_lshl_add_u32 v67, v68, 1, v67
s_mul_i32 s44, s52, {2*HSTR}
s_add_u32 s44, s44, {L_H}
s_add_u32 s45, s44, s48
v_add_u32 v{VCA}, s45, v67
v_add_u32 v{VCA+1}, 1024, v{VCA}
v_add_u32 v{VCA+2}, 2048, v{VCA}
v_add_u32 v{VCA+3}, 3072, v{VCA}
v_lshlrev_b32 v67, 5, v10
v_lshlrev_b32 v69, 4, v11
v_sub_u32 v68, v69, v67
s_add_u32 s49, {lURL}, s48
s_add_u32 s49, s49, {L_UR + 512}
v_add_u32 v{VCG}, s49, v68
v_and_b32 v68, 16, v69
v_sub_u32 v68, v68, v67
s_lshl_b32 s48, {lKH}, 11
s_sub_u32 s45, {lURL}, s48
s_add_u32 s45, s45, {L_UR + 4064 - 1536}
v_add_u32 v{VCD}, s45, v68
s_add_u32 {lURL}, {lURL}, s48
s_add_u32 {lURL}, {lURL}, {L_UR}
v_lshl_add_u32 v68, v12, 3, v31
v_lshlrev_b32 v68, 1, v68
s_sub_u32 s44, s44, 32
v_mov_b32 v69, s44
v_mov_b32 v70, {lD}
v_cmp_gt_u32 vcc, 32, v1
v_lshl_add_u32 v{VYS}, v11, 3, v67
s_and_b32 s45, {lCH}, 63
v_cndmask_b32 v69, v70, v69, vcc
v_add_u32 v{VDA}, v69, v68
s_lshr_b32 s45, s45, 4
s_lshl_b32 s48, {sCG}, 2
s_add_u32 s45, s45, s48
s_lshl_b32 s45, s45, 8
s_add_u32 {lF3}, s45, {F3}
v_and_b32 v68, 31, v1
v_lshlrev_b32 v{VFL}, 3, v68
v_lshl_add_u32 v{ZAD+5}, v68, 2, {lD}
v_add_u32 v{ZAD+5}, {L_Z - L_MISC}, v{ZAD+5}
v_mul_u32_u24 v67, 6144, v12
v_lshl_add_u32 v67, v10, 7, v67
s_mul_i32 s45, {lKH}, 12288
v_add_u32 v67, s45, v67
v_lshrrev_b32 v69, 5, v1
v_lshrrev_b32 v68, 1, v10
v_xor_b32 v68, v68, v69
s_lshl_b32 s45, s52, 2
v_xor_b32 v68, s45, v68
v_lshl_add_u32 v{ZAD}, v68, 4, v67
v_xor_b32 v{ZAD+1}, 32, v{ZAD}
v_add_u32 v{ZAD+2}, 49152, v{ZAD}
v_add_u32 v{ZAD+3}, 49152, v{ZAD+1}
s_lshl_b32 s45, s52, 6
s_add_u32 s45, s45, {L_GW}
v_lshl_add_u32 v{ZAD+4}, v69, 4, s45
s_lshl_b32 s45, {lLW}, 12
s_add_u32 s45, s45, {L_SCR}
v_add_u32 v12, s45, v{VL16}
v_xor_b32 v13, 4096, v12
s_lshl_b32 s45, {lLW}, 10
s_add_u32 s45, s45, {L_Q}
v_add_u32 v14, s45, v{VL16}          ; Q address
v_min_u32 v15, 4, v1
v_mul_u32_u24 v15, 768, v15
v_add_u32 v15, {L_MB}, v15
ds_write_b32 v15, v66
s_lshl_b32 {sF4}, {sCG}, 5
s_add_u32 {sF4}, {sF4}, {sTB}
s_lshl_b32 {sF4}, {sF4}, 2
s_add_u32 {sF4}, {sF4}, {lLW}
s_lshl_b32 {sF4}, {sF4}, 3
s_add_u32 {sF4}, {sF4}, {F4}
""")
att_setup(True, 67, 68)
if OPT.get("c1pre", 0): issue_chunk(1)
A("s_waitcnt lgkmcnt(0)\ns_barrier")
stamp("bk")
nxt_c = 2 if OPT.get("c1pre", 0) else 1
def upto(n):
    global nxt_c
    while nxt_c <= min(n, 7):
        if nxt_c == 7:
            A(f"buffer_load_dwordx2 v[68:69], v{VFL}, {srd(SWS)}, {lF3} offen sc1"); vq.append("f3")
        issue_chunk(nxt_c); nxt_c += 1
upto(2 - OPT["c2late"])
for c in range(8):
    vwait(f"c{c}")
    stamp(f"p{c}")
    A("s_barrier")
    stamp(f"b{c}")
    sl = SLOTS[c]; za, zo = (ZAD, sl) if sl < 49152 else (ZAD + 2, sl - 49152)
    for j in range(2):
        A(f"ds_read_b128 {vr(ZX+4*j,4)}, v{za+j} offset:{zo}\nds_read_b128 {vr(ZG+4*j,4)}, v{ZAD+4} offset:{128*c + 32*j}")
    if c == 3:
        A(f"global_load_dwordx2 v[64:65], v66, {pp(P_DBG)} sc1"); vq.append("non")
        A(f"ds_write_b16 v70, v71 offset:32")
    if c == OPT["hcp"]:
        for q in range(2): A(f"ds_read_b128 {vr(72+8*q,4)}, v62 offset:{1024*q}\nds_read_b32 v{76+8*q}, v62 offset:{1024*q+16}")
    upto(c + 3)
    if c == 6:
        vwait("f3")
        take_nonce(64)
        poll(lF3, 68, VFL, preloaded=True)
        stamp("f3seen")
        A(f"""
        s_add_u32 s45, {lYO}, {WS_UR}
        s_mov_b32 m0, {lURL}
        s_add_u32 {lYO}, {lYO}, {WS_Y}
        buffer_load_dwordx4 v{VL16}, {srd(SWS)}, s45 offen sc1 lds
        buffer_load_dwordx4 v{VL16}, {srd(SWS)}, s45 offen offset:1024 sc1 lds
        """)
        vq.extend(["ur"] * 2)
    if c == 6: issue_q(range(LQ))
    A("s_waitcnt lgkmcnt(0)")
    if c == OPT["hcp"]:
        for q in range(2):
            for i in range(4): A(f"v_alignbit_b32 v{88+4*q+i}, v{72+8*q+i+1}, v{72+8*q+i}, 16")
            A(f"ds_write_b128 v62, {vr(88+4*q,4)} offset:{1024*q + HSTR}")
    for j in range(2):
        A(f"{MF32} {vr(ZA,16)}, {vr(ZG+4*j,4)}, {vr(ZX+4*j,4)}, {'0' if c == 0 and j == 0 else vr(ZA,16)}")
lF4C, lYG = lF3, lHL
def y_setup():
    A(f"""
    s_lshl_b32 s45, {sHG}, 10
    s_lshl_b32 s48, {sHEAD}, 8
    s_add_u32 s45, s45, s48
    s_add_u32 {lF4C}, s45, {F4}
    v_lshrrev_b32 v200, 3, v1
    v_lshlrev_b32 v200, 12, v200
    v_and_b32 v210, 7, v1
    v_lshl_add_u32 v200, v210, 4, v200
    s_lshl_b32 {lYG}, {sHG}, 18
    s_lshl_b32 s45, {sRB}, 7
    s_add_u32 {lYG}, {lYG}, s45
    s_lshl_b32 s45, {sHEAD}, 16
    s_add_u32 {lYG}, {lYG}, s45
    s_add_u32 {lYG}, {lYG}, {WS_Y}
    """)
def ydma():
    A(f"""
    s_add_u32 m0, {lWQL}, {L_Y}
    s_add_u32 s45, {lYG}, 32768
    buffer_load_dwordx4 v200, {srd(SWS)}, {lYG} offen sc1 lds
    s_add_u32 m0, {lWQL}, {L_Y + 1024}
    s_nop 0
    buffer_load_dwordx4 v200, {srd(SWS)}, s45 offen sc1 lds
    """)
y_setup()
A(f"ds_write_b32 v{ZAD+5}, v{ZA}\ns_waitcnt vmcnt(0) lgkmcnt(0)")
stamp("pa")
A("s_barrier")
stamp("ba")
CA = [72, 136]; CG = [104, 168]; ACC = 24; DB = 56
def conv_reads(s):
    b = s & 1; out = []
    for i in range(8):
        out.append(f"ds_read_b128 {vr(CG[b]+4*i,4)}, v{VCG} offset:{512*(7-i) + 64*s}")
        o = (512 * (i & 1) + 64 * s) // 4
        out.append(f"ds_read2_b32 {vr(CA[b]+4*i,2)}, v{VCA + i//2} offset0:{o} offset1:{o+1}")
        out.append(f"ds_read2_b32 {vr(CA[b]+4*i+2,2)}, v{VCA + i//2} offset0:{o+2} offset1:{o+3}")
    return out
def conv_mfmas(s, order=None):
    b = s & 1; out = []; seen = set()
    pairs = sorted([(i, d) for i in range(8) for d in range(8) if i + d <= 7], key=order or (lambda p: (max(p), p[0] + p[1])))
    for i, d in pairs:
        j = i + d
        c = "0" if (s == 0 and j not in seen) else vr(ACC + 4*j, 4)
        seen.add(j)
        out.append((max(i, d), j, f"{MF16} {vr(ACC+4*j,4)}, {vr(CA[b]+4*i,4)}, {vr(CG[b]+4*d,4)}, {c}"))
    return out
for r in conv_reads(0): A(r)
A("s_waitcnt lgkmcnt(12)")
cnt = 0
def conv_tick():
    global cnt
    if cnt == OPT["lat"]:
        late_loads(8)
    if cnt == OPT["lf1p"]: f1_pre()
    cnt += 1
for s in range(3):
    nxt = conv_reads(s + 1)
    if s == 1: nxt = nxt + [f"ds_read_b128 {vr(VAD,4)}, v{VDA}"]
    if s == 2: nxt = nxt + [f"ds_read_b128 {vr(DB+4*jj,4)}, v{VCD} offset:{512*(3-jj)}" for jj in range(4)]
    k = 0
    for n, (lvl, j, m) in enumerate(conv_mfmas(s)):
        if s == 0 and n == 16: A("s_waitcnt lgkmcnt(4)")
        conv_tick()
        A(m)
        if s == 0 and n < 12: continue
        if k < len(nxt): A(nxt[k]); k += 1
    assert k == len(nxt)
    A("s_waitcnt lgkmcnt(0)")
    stamp(f"cs{s}")
LK = list(range(SPLIT - 1, -1, -1)); LPRE = OPT["lpre"]
LT = {k: [(KF[0], VF[0]), (KF[1], VF[1]), (72, 76), (84, 88), (96, 100)][i] for i, k in enumerate(LK)}
def l_f1(n):
    A(f"s_waitcnt vmcnt({n})\ns_cmp_eq_u32 {sRB}, 0\ns_cbranch_scc1 L_LF1OK")
    poll(sF1P, 4, VF1A, preloaded=True)
    A("L_LF1OK:")
    stamp("f1seen")
if LPRE: l_f1(0)
A(f"v_mov_b32 v16, 1\nv_mov_b32 v18, {L_GS}\ns_cmp_eq_u32 {lKH}, 0\ns_cbranch_scc0 L_KH1")
for kh in range(2):
    outg = range(4, 8) if kh == 0 else range(0, 4)
    keep = range(0, 4) if kh == 0 else range(4, 8)
    seq = [(j, m) for _, j, m in conv_mfmas(3, order=lambda p: (0 if (p[0] + p[1]) in outg else 1, p[0] + p[1]))]
    seq += [(j, f"{MF16} {vr(ACC+4*j,4)}, {vr(VAD,4)}, {vr(DB+4*(j%4),4)}, {vr(ACC+4*j,4)}") for j in keep]
    lastpos = {j: max(n for n, (jj, _) in enumerate(seq) if jj == j) for j in outg}
    lones = sum((ones(LT[k][1]) for k in LK[2:]), [])
    ll = sum((tile_loads(k, *LT[k]) for k in LK[:LPRE]), [])
    for n, (j, m) in enumerate(seq):
        A(m)
        if lones: A(lones.pop(0))
        if n + 108 == OPT["lf1p"]: f1_pre()
        if ll and n % (36 // (2 * LPRE)) == 0:
            assert not lones or len(ll) > 2 * LPRE - 4
            A(ll.pop(0))
        for jo in outg:
            if n == lastpos[jo] + 8: A(f"ds_write_b128 v13, {vr(ACC+4*jo,4)} offset:{1024*(jo%4)}")
    assert all(lastpos[j] + 8 < len(seq) for j in outg) and not ll
    A("s_waitcnt lgkmcnt(0)\ns_mov_b64 exec, 15\nds_add_u32 v15, v16\ns_mov_b64 exec, -1")
    if OPT["lprio"]: A("s_setprio 1")
    stamp("convend")
    lds_wait(VT3, 17, 4)
    stamp("lsync")
    for jj in range(4): A(f"ds_read_b128 {vr(144+4*jj,4)}, v12 offset:{1024*jj}")
    kb = ACC + 4 * keep[0]
    for jj in range(4):
        A(f"s_waitcnt lgkmcnt({3-jj})")
        for i in range(0, 4, 2): A(f"v_pk_add_f32 {vr(kb+4*jj+i,2)}, {vr(kb+4*jj+i,2)}, {vr(144+4*jj+i,2)}")
        A(f"v_cvt_pk_bf16_f32 v{160+2*jj}, v{kb+4*jj}, v{kb+4*jj+1}\nv_cvt_pk_bf16_f32 v{161+2*jj}, v{kb+4*jj+2}, v{kb+4*jj+3}")
    if kh == 0: A("s_branch L_KHD\nL_KH1:")
A("L_KHD:")
for jj in range(4):
    A(f"buffer_store_dwordx2 {vr(160+2*jj,2)}, v{VYS}, {srd(SWS)}, {lYO} offen offset:{512*jj} sc1")
if not LPRE: l_f1(4)
for k in LK[LPRE:]:
    for l in tile_loads(k, *LT[k]): A(l)
stamp("ydone")
lds_wait(18, 17, 12)
A(f"ds_read_b128 {vr(QF[0],4)}, v14\nds_read_b128 {vr(QF[1],4)}, v14 offset:4096\ns_waitcnt lgkmcnt(0)")
stamp("att0")
litems = [(k, qt, 1 if (k, qt) in ((1, 1), (0, 0)) else 0) for k in LK for qt in (0, 1) if (k, qt) != (0, 1)]
F4I = OPT["f4i"]
hooks = {}; lst = dict(wo=0, fl=0)
def l_m(i):
    def f():
        if i == F4I:
            A(f"s_waitcnt vmcnt({lst['wo'] + 3 * len(LK[LPRE:])})"); flag_store(sF4, 168); lst["fl"] = 1
        left = len(litems) - OPT["woe"] - i
        n = -(-(8 - lst["wo"]) // left) if left > 0 and i >= OPT["lw0"] else 0
        for _ in range(n): wo_dma(lst["wo"]); lst["wo"] += 1
    return f
def l_k(k):
    def f(): A(f"s_waitcnt vmcnt({3*k + (4 if LK.index(k) < LPRE else 0) + lst['wo'] + lst['fl']})")
    return f
for i in range(len(litems)): hooks[('m', i)] = l_m(i)
for k in LK: hooks[('k', k)] = l_k(k)
if OPT["lp0"] < len(litems): hooks[('i', OPT["lp0"])] = lambda: A("s_setprio 0")
A(f"s_cmp_ge_u32 {sK0}, {SPLIT}\ns_cbranch_scc1 L_LX_NONE")
att_run(litems, LT, hooks, lambda i: "L_LX" if i <= F4I else "L_LX2")
assert lst["wo"] == 8 and F4I < len(litems)
A("L_LDONE:")
stamp("attend")
A(f"s_mov_b32 {sF4}, {lF4C}\ns_setprio 0\nv_mov_b32 v{VF1A}, v{VFL}")
hello_check(8)
exchange(1)

OO = O[0]
A("L_ATTFIN:\ns_or_b64 vcc, vcc, s[50:51]")
A("s_branch L_SLOW" if OPT["force_slow"] else "s_cbranch_vccnz L_SLOW")
A("L_ATTNORM:")
for i in range(0, 8, 2): A(f"v_pk_mul_f32 {vr(OO+i,2)}, {vr(OO+i,2)}, {vr(OO+10,2)} op_sel_hi:[1,0]")
for i in range(4): A(f"v_cvt_pk_bf16_f32 v{P+i}, v{OO+2*i}, v{OO+2*i+1}")
fl = f"""
buffer_load_dwordx2 v[52:53], v{VF1A}, {srd(SWS)}, {sF4} offen sc1
s_lshl_b32 s45, {sHG}, 4
s_add_u32 s45, s45, {sWAVE}
s_lshl_b32 s45, s45, 3
s_add_u32 s45, s45, {sF2}
v_mov_b32 v16, s42
v_mov_b32 v17, s43
v_mov_b32 v18, 0
s_mov_b64 exec, 1
s_waitcnt vmcnt(1)
"""
if OPT["local"]:
    A(f"""
    s_cmp_eq_u32 {sLOC}, 0
    s_cbranch_scc1 L_OGLOB
    buffer_store_dwordx4 {vr(P,4)}, v{VL16}, {srd(SWS)}, {sOOFF} offen {["", "nt", "sc0", "sc0 nt"][OPT.get("olst", 0)]}
    """)
    A(fl)
    A(f"buffer_store_dwordx2 v[16:17], v18, {srd(SWS)}, s45 offen")
    A("s_branch L_ODONE\nL_OGLOB:")
A(f"buffer_store_dwordx4 {vr(P,4)}, v{VL16}, {srd(SWS)}, {sOOFF} offen sc1")
A(fl)
A(f"buffer_store_dwordx2 v[16:17], v18, {srd(SWS)}, s45 offen sc1")
A("L_ODONE:\ns_mov_b64 exec, -1")
stamp("ost")
A(f"s_cmp_ge_u32 {sWAVE}, 4\ns_cbranch_scc1 L_FHELP")
A(f"""
v_lshrrev_b32 v11, 5, v1
v_lshrrev_b32 v13, 2, v1
v_and_b32 v13, 3, v13
v_lshrrev_b32 v14, 1, v13
v_xor_b32 v14, {gHP}, v14
v_lshlrev_b32 v14, 6, v14
v_lshl_add_u32 v15, v11, 2, v13
v_lshl_add_u32 v14, v15, 7, v14
v_and_b32 v15, 1, v1
v_lshl_add_u32 v14, v15, 5, v14
v_lshrrev_b32 v15, 4, v1
v_and_b32 v15, 1, v15
v_lshl_add_u32 v14, v15, 4, v14
v_lshrrev_b32 v24, 1, v1
v_and_b32 v24, 1, v24
v_lshl_add_u32 v14, v24, 3, v14
v_sub_f32 v26, 1.0, v208
""")
assert L_WO == 0
BT = 212
WO = lambda k: 72 + 4 * k
fin = []
for e in range(16):
    fin.append(f"v_lshlrev_b32 v{BT+e}, 16, v{XK+e//2}" if e % 2 == 0 else f"v_and_b32 v{BT+e}, 0xffff0000, v{XK+e//2}")
    fin.append(f"v_mul_f32 v{BT+e}, v{BT+e}, v26")
fin += lines(f"""
v_lshl_add_u32 v24, v11, 4, v13
v_lshlrev_b32 v24, 7, v24
v_lshl_add_u32 v24, v15, 5, v24
v_and_b32 v25, 3, v1
v_lshl_add_u32 v24, v25, 3, v24
s_lshl_b32 s45, {gHP}, 12
s_lshl_b32 s48, {gRT}, 6
s_add_u32 s45, s45, s48
s_add_u32 s45, s45, {L_Y}
v_add_u32 v24, s45, v24
s_lshl_b32 s45, {gRT}, 12
s_add_u32 s45, s45, {L_O}
v_add_u32 v25, s45, v{VL16}
v_and_b32 v10, 15, v1
v_lshlrev_b32 v12, 10, v10
v_lshl_add_u32 v12, v11, 5, v12
v_lshl_add_u32 v12, v15, 4, v12
s_lshl_b32 s45, {sRB}, 16
s_lshl_b32 s48, {gRT}, 15
s_add_u32 s45, s45, s48
s_lshl_b32 s48, {sHG}, 7
s_add_u32 s45, s45, s48
s_lshl_b32 s48, {gHP}, 6
s_add_u32 s56, s45, s48
s_add_u32 s57, s56, 16384
s_mov_b32 s{SOUT}, s{P_OUT}
s_and_b32 s{SOUT+1}, s{P_OUT+1}, 0xffff
s_mov_b32 s{SOUT+2}, 0x200000
s_mov_b32 s{SOUT+3}, 0x20000
""")
KQ = [[k for k in range(32) if (k >> 1) % 4 == q] for q in range(4)]
for k in sum(KQ, []):
    A(f"ds_read_b64_tr_b16 {vr(WO(k),2)}, v14 offset:{k*2048}\nds_read_b64_tr_b16 {vr(WO(k)+2,2)}, v14 offset:{k*2048+1024}")
    for _ in range(2):
        if fin: A(fin.pop(0))
assert not fin
OA = 228
OFS = [[28, 32, 36, 40, 44, 48, 52, 56], [60, 64, 68, 244, 248, 252, 4, 8]]
ymul = []
for e in range(16):
    ymul.append(f"v_lshlrev_b32 v27, 16, v{16+e//2}" if e % 2 == 0 else f"v_and_b32 v27, 0xffff0000, v{16+e//2}")
    ymul.append(f"v_mul_f32 v{BT+e}, v{BT+e}, v27")
def ordr(q): return [f"ds_read_b128 {vr(OFS[q&1][i],4)}, v25 offset:{8192*(k>>2) + 1024*(k&3)}" for i, k in enumerate(KQ[q])]
A("s_waitcnt vmcnt(0)\ns_barrier")
stamp("bf")
for r in ordr(0): A(r)
LAGQ = 4
for q in range(4):
    nx = ordr(q + 1) if q < 3 else [f"ds_read_b64_tr_b16 {vr(16+2*j,2)}, v24 offset:{512*j}" for j in range(4)]
    for i, k in enumerate(KQ[q]):
        if i < 8 - LAGQ: A(f"s_waitcnt lgkmcnt({7 - i})")
        if i == 8 - LAGQ:
            A("s_waitcnt lgkmcnt(0)\ns_barrier")
            if q == 1: stamp("bf2")
        A(f"{MF32} {vr(OA,16)}, {vr(WO(k),4)}, {vr(OFS[q&1][i],4)}, {'0' if q == 0 and i == 0 else vr(OA,16)}")
        if i >= 8 - LAGQ:
            n = 3 if q < 3 else 4
            for r in nx[:n]: A(r)
            nx = nx[n:]
        if q == 3 and i == 6: A("s_waitcnt lgkmcnt(0)")
        if q == 3 and i >= 6:
            for _ in range(6): A(ymul.pop(0))
for l in ymul: A(l)
stamp("mmend")
for e in range(16): A(f"v_fmac_f32 v{BT+e}, v208, v{OA+e}")
for i in range(8): A(f"v_cvt_pk_bf16_f32 v{28+i}, v{BT+2*i}, v{BT+2*i+1}")
for i in range(4): A(f"v_permlane16_swap_b32 v{28+i}, v{32+i}")
OST = {0: "", 1: "sc1", 2: "nt", 3: "sc0 sc1", 4: "sc1 nt", 5: "sc0 sc1 nt"}[OPT.get("ost", 2)]
A(f"buffer_store_dwordx4 v[28:31], v12, {srd(SOUT)}, s56 offen {OST}\nbuffer_store_dwordx4 v[32:35], v12, {srd(SOUT)}, s57 offen {OST}")
A("s_branch L_FIN")
A(f"""
L_FHELP:
; lanes 0..31: flags of producers 2lw, 2lw+1; lanes 32..63: this workgroup's own waves
v_and_b32 v23, 7, v1
v_lshlrev_b32 v23, 3, v23
v_lshrrev_b32 v22, 3, v1
v_and_b32 v22, 1, v22
s_lshl_b32 s45, {sHEAD}, 1
v_add_u32 v22, s45, v22
v_cmp_gt_u32 vcc, 32, v1
v_mov_b32 v24, {sHG}
s_lshl_b32 s48, {sHEAD}, 14
v_cndmask_b32 v22, v24, v22, vcc
v_lshl_add_u32 v22, v22, 7, v23
s_lshl_b32 s49, {sRB}, 16
s_add_u32 s49, s49, s48
s_add_u32 s49, s49, {WS_UR}
""")
poll(sF2, 20, 22)
stamp("f2seen")
def odma(q):
    for qt in range(2):
        o = (q >> 1) * 8192 + qt * 4096 + (q & 1) * 2048
        A(f"s_add_u32 m0, s48, {L_O + o}\ns_add_u32 s45, s49, {o}")
        for i in range(2): A(f"buffer_load_dwordx4 v{VL16}, {srd(SWS)}, s45 offen offset:{1024*i} sc1 {'nt' if OPT.get('ont') else ''} lds")
odma(0); odma(1)
A("s_waitcnt vmcnt(4)\ns_barrier")
stamp("bf")
odma(2); odma(3)
A(f"""
v_cmp_ne_u64 vcc, {sNON}, v[52:53]
s_waitcnt vmcnt(8)
s_barrier
s_cbranch_vccnz L_YLATE
""")
ydma()
A("s_waitcnt vmcnt(6)\ns_barrier\ns_waitcnt vmcnt(2)\ns_barrier\nL_YJOIN:\ns_waitcnt vmcnt(0)\ns_barrier\nL_FIN:")
if OPT.get("echo"):
    A("s_waitcnt vmcnt(0)")
    if not OPT["stamps"]: stamp("end")
    A("""
    s_memrealtime s[98:99]
    s_waitcnt lgkmcnt(0)
    s_add_u32 s97, s97, s98
    L_ECHO:
    s_memrealtime s[98:99]
    s_waitcnt lgkmcnt(0)
    s_sub_u32 s45, s98, s97
    s_cmp_lt_i32 s45, 0
    s_cbranch_scc1 L_ECHO
    """)
if OPT["stamps"]:
    A("s_waitcnt vmcnt(0)")
    stamp("end")
    A(f"""
    s_memrealtime s[98:99]
    s_waitcnt lgkmcnt(0)
    v_writelane_b32 v2, s98, 63
    v_writelane_b32 v2, s46, 62
    s_lshl_b32 s45, s2, 3
    s_add_u32 s45, s45, {sWAVE}
    s_lshl_b32 s45, s45, 8
    s_add_u32 s45, s45, {WS_ST}
    v_lshlrev_b32 v3, 2, v1
    buffer_store_dword v2, v3, {srd(SWS)}, s45 offen
    """)
A("L_END:\ns_endpgm")

A(f"L_YLATE:\nbuffer_load_dwordx2 v[52:53], v{VF1A}, {srd(SWS)}, {sF4} offen sc1\ns_waitcnt vmcnt(5)\ns_barrier\ns_waitcnt vmcnt(1)\ns_barrier\ns_waitcnt vmcnt(0)")
stamp("ylate")
poll(sF4, 52, VF1A, preloaded=True)
ydma()
A("s_branch L_YJOIN")
A("L_GX:")
for g in range(8): wo_dma(g)
A("s_branch L_GDONE")
A("L_LX_NONE:")
for o in O:
    for i in range(9): A(f"v_mov_b32 v{o+i}, 0")
A("L_LX:\ns_waitcnt vmcnt(0)")
flag_store(sF4, 168)
A("L_LX2:")
for g in range(8): wo_dma(g)
A("s_branch L_LDONE")
MD, MF2 = 72, 88
A("L_SLOW:")
for l in build_mask(MD, False, 104, 105) + build_mask(MF2, True, 104, 105): A(l)
A(f"""
s_cmp_eq_u32 {sQT}, 0
s_cselect_b64 vcc, -1, 0
s_lshl_b32 s49, {sRB}, 1
s_add_u32 s49, s49, {sQT}
s_add_u32 s49, s49, 1
s_min_u32 s49, s49, 9
s_lshl_b32 s48, {sQT}, 13
s_add_u32 s48, s48, {sKVB}
v_mov_b32 v106, 0xff800000
""")
for i in range(4): A(f"v_cndmask_b32 v{QF[0]+i}, v{QF[1]+i}, v{QF[0]+i}, vcc")
def cmask(j): return vr(MD, 16) if j == 0 else (vr(MF2, 16) if j == 8 else "0")
def gK(j): A(f"s_sub_u32 s45, s48, {j*8192}\nbuffer_load_dwordx4 {vr(KF[0],4)}, v{VL16}, {srd(SWS)}, s45 offen sc1")
def gV(j): A(f"s_mov_b64 exec, {VMASK}\nbuffer_load_dwordx4 {vr(VF[0],4)}, v{VVA}, {srd(SWS)}, s45 offen sc1\nbuffer_load_dwordx4 {vr(VF[0]+4,4)}, v{VVA}, {srd(SWS)}, s45 offen offset:512 sc1\ns_mov_b64 exec, -1")
for j in range(9):
    gK(j)
    A("s_waitcnt vmcnt(0)")
    A(f"{MF32} {vr(S[0],16)}, {vr(KF[0],4)}, {vr(QF[0],4)}, {cmask(j)}")
    for i in range(0, 16, 2): A(f"v_max3_f32 v106, v{S[0]+i}, v{S[0]+i+1}, v106")
    if j < 8: A(f"s_cmp_eq_u32 s49, {j+1}\ns_cbranch_scc1 L_SLOW2")
A("L_SLOW2:\nv_mov_b32 v107, v106\nv_permlane32_swap_b32 v106, v107\nv_max_f32 v106, v106, v107")
for j in range(9):
    gK(j); gV(j)
    A("s_waitcnt vmcnt(0)")
    A(f"{MF32} {vr(S[0],16)}, {vr(KF[0],4)}, {vr(QF[0],4)}, {cmask(j)}")
    for i in range(16): A(f"v_sub_f32 v{S[0]+i}, v{S[0]+i}, v106")
    for i in range(16): A(f"v_exp_f32 v{S[0]+i}, v{S[0]+i}")
    for i in range(8): A(f"v_cvt_pk_bf16_f32 v{P+i}, v{S[0]+2*i}, v{S[0]+2*i+1}")
    A(f"{MF32} {vr(OO,16)}, {vr(VF[0],4)}, {vr(P,4)}, {'0' if j == 0 else vr(OO,16)}")
    A(f"{MF32} {vr(OO,16)}, {vr(VF[0]+4,4)}, {vr(P+4,4)}, {vr(OO,16)}")
    if j < 8: A(f"s_cmp_eq_u32 s49, {j+1}\ns_cbranch_scc1 L_SLOW3")
A(f"L_SLOW3:\ns_nop 11\nv_rcp_f32 v{OO+10}, v{OO+8}\ns_nop 0\ns_branch L_ATTNORM")

n = A.fix(verbose=bool(OPT.get("verbose", 0)))
label = NAME + "_kernel"
hdr = open("cdna_kernels/" + NAME + ".s.ref").read().split("; Override launch")[0]
out = hdr + f"""; @launch grid=(256,1,1) block=(512,1,1) lds=163840
; stamps: {" ".join(STN.keys())}
.amdgcn_target "amdgcn-amd-amdhsa--gfx950"
.text
.globl {label}
.p2align 8
.type {label},@function
{label}:
{A.text()}
.section .rodata,"a"
.p2align 6
.amdhsa_kernel {label}
  .amdhsa_next_free_vgpr 256
  .amdhsa_next_free_sgpr 102
  .amdhsa_accum_offset 256
  .amdhsa_group_segment_fixed_size 0
  .amdhsa_kernarg_size 104
  .amdhsa_user_sgpr_count 2
  .amdhsa_user_sgpr_kernarg_segment_ptr 1
  .amdhsa_system_sgpr_workgroup_id_x 1
.end_amdhsa_kernel
"""
open(sys.argv[1], "w").write(out)
print(f"wrote {sys.argv[1]}: {len(A.lines)} lines, {n} nops inserted")
```

```python
import sys, math, struct
sys.path.insert(0, "gen")
from asmx import Asm

NAME = "gated_mix__sliding_block__ssm_conv_h3__prompt"
OPT = dict(stamps=0, force_slow=0, spin=1 << 20, pf=1, f3c=1, local=1, split=4, f4i=2, cpf=1, span=20992,
           slp=0, lq=1, g1=3, lat=40, lf1p=100, lpre=4, nqc=3, hlate=1, yp=6, gall=0, apre=1, nq2=0, nq3=0, w1at=90, w2at=108, bqat=112, lburst=1, omode=2, l3p=0, lp0=4, lprio=1, woe=2, p3first=1, gw0=2, lw0=0, gri=1, c2late=0, hcp=2, f1p=15, yi=3)
for a in sys.argv[2:]:
    k, v = a.split("="); OPT[k] = v if k == "echo" else int(v, 0)

WS_KV, WS_O, WS_UR, WS_Y, WS_F, WS_ST, WS_SIZE = 0xC00000, 0x400000, 0x600000, 0x800000, 0xA00000, 0xB00000, 0x1000000
F3 = WS_F
F1 = WS_F + 0x2000
F4 = WS_F + 0x4000
F2 = WS_F + 0x8000
SLOTS = [0, 24576, 49152, 73728] * 2
L_H = 98304 + 64; HSTR = 4160
L_X = 115200
L_UR = 131584; URSTR = 4608
L_MISC = 140800
L_Z = L_MISC + 512
L_GW = L_MISC + 1024
L_KT = 146432; L_VT = L_KT + 9216
L_SCR = 147456
L_Y = 65536
L_MB = L_MISC + 2048
L_GS = L_MB + 3072
L_NL = L_MB + 3088
L_Q = 73728; L_OWN = L_Q + 8192
L_WO = 0; L_O = 98304
LOG2E = math.log2(math.e)
def f32(x): return "0x%08x" % struct.unpack("<I", struct.pack("<f", x))[0]

SX, SW, SWO, SK, SV, SH, SWS, SOUT = 4, 8, 12, 16, 20, 24, 28, 32
srd = lambda b: f"s[{b}:{b+3}]"
sWAVE, sRB, sHG, sCG, sTB, sLOC = "s36", "s37", "s38", "s39", "s40", "s41"
sNON = "s[42:43]"
sHEAD, sQT, sK0, sF1P, sOOFF, sF2, sF4, sWOG, sWOL, sROT, sKVB, sFH = "s53", "s54", "s55", "s56", "s57", "s58", "s59", "s62", "s63", "s90", "s94", "s95"
VMASK, ONES = "s[60:61]", "s[100:101]"
P_X, P_W, P_WO, P_K, P_V, P_SK, P_H, P_D, P_GW, P_OUT, P_DBG, P_WS = 64, 66, 68, 72, 74, 76, 78, 80, 82, 84, 86, 88
pp = lambda p: f"s[{p}:{p+1}]"

A = Asm()
STN = {}
for i, n in enumerate("start ptrs kvland bk predone p0 b0 p1 b1 p2 b2 p3 b3 p4 b4 p5 b5 f3seen p6 b6 p7 b7 kvend pa ba f1pub pw bw pw2 bw2 f1a qend f1b bq f1seen own cs0 cs1 cs2 lissued convend lsync ydone att0 attend bx ost f2seen bf bf2 ylate mmend end".split()):
    STN[n] = i
LITE = "start bk b0 b4 b7 kvend ba f1pub pw bw pw2 bw2 qend bq own cs0 cs1 cs2 lissued convend lsync ydone att0 attend bx ost f2seen bf bf2 mmend end f1seen".split()
TM = "s_memrealtime" if OPT.get("rt") else "s_memtime"
def stamp(name):
    if OPT.get("echo") == name:
        A("s_memrealtime s[98:99]\ns_waitcnt lgkmcnt(0)\ns_sub_u32 s97, s98, s96")
    if not OPT["stamps"]: return
    if OPT["stamps"] == 2 and (name in ("b1", "b2", "b3", "b5", "b6", "ptrs") or (name[0] == "p" and name[1].isdigit())): return
    if OPT["stamps"] == 3 and name not in LITE: return
    if name == "start":
        A(f"s_waitcnt lgkmcnt(0)\n{TM} s[98:99]\ns_mov_b32 s97, {STN[name]}")
    else:
        A(f"s_bfm_b64 exec, 1, s97\nv_mov_b32 v2, s98\ns_mov_b64 exec, -1\n{TM} s[98:99]\ns_mov_b32 s97, {STN[name]}")
    if name == "end": A(f"s_waitcnt lgkmcnt(0)\nv_writelane_b32 v2, s98, {STN[name]}")

def mksrd(b, p, size):
    A(f"s_mov_b32 s{b}, s{p}\ns_and_b32 s{b+1}, s{p+1}, 0xffff\ns_mov_b32 s{b+2}, {size}\ns_mov_b32 s{b+3}, 0x20000")
def vr(b, n): return f"v[{b}:{b+n-1}]"
def lines(t): return [l.strip() for l in t.split("\n") if l.strip()]
MF32 = "v_mfma_f32_32x32x16_bf16"; MF16 = "v_mfma_f32_16x16x32_bf16"

def take_nonce(vt):
    l = A.lab("NON"); d = A.lab("NOND")
    A(f"""
    s_mov_b32 s44, {OPT['spin']}
    {l}:
    v_readfirstlane_b32 s42, v{vt}
    v_readfirstlane_b32 s43, v{vt+1}
    s_cmp_lg_u32 s42, 0
    s_cbranch_scc1 {d}
    global_load_dwordx2 {vr(vt,2)}, v{vt+2}, {pp(P_DBG)} sc1
    s_waitcnt vmcnt(0)
    s_sub_u32 s44, s44, 1
    s_cbranch_scc0 {l}
    {d}:
    """)
def poll(soff, vt, vaddr, preloaded=False, hello=False):
    l = A.lab("POLL"); d = A.lab("POLLD"); c = A.lab("POLLC")
    A(f"s_mov_b32 s44, {OPT['spin']}")
    if preloaded: A(f"s_branch {c}")
    A(f"""
    {l}:
    buffer_load_dwordx2 {vr(vt,2)}, v{vaddr}, {srd(SWS)}, {soff} offen sc1
    s_waitcnt vmcnt(0)
    {c}:
    """)
    if hello:
        A(f"v_xor_b32 v{vt+1}, s43, v{vt+1}\nv_cmp_ne_u32 vcc, s42, v{vt}\nv_and_b32 v{vt}, 0x0fffffff, v{vt+1}\nv_cmp_ne_u32 s[50:51], 0, v{vt}\ns_or_b64 vcc, vcc, s[50:51]")
    else:
        A(f"v_cmp_ne_u64 vcc, {sNON}, {vr(vt,2)}")
    A(f"""
    s_sub_u32 s44, s44, 1
    s_cbranch_scc1 {d}
    s_cbranch_vccnz {l}
    {d}:
    """)
def flag_store(soff, vt, cache="sc1", hi="s43"):
    A(f"""
    v_mov_b32 v{vt}, s42
    v_mov_b32 v{vt+1}, {hi}
    v_mov_b32 v{vt+2}, 0
    s_mov_b64 exec, 1
    buffer_store_dwordx2 {vr(vt,2)}, v{vt+2}, {srd(SWS)}, {soff} offen {cache}
    s_mov_b64 exec, -1
    """)
def lds_wait(vaddr, vt, val):
    l = A.lab("LW"); d = A.lab("LWD")
    A(f"""
    s_mov_b32 s44, {OPT['spin']}
    s_branch {l}c
    {l}:
    s_sleep {OPT['slp']}
    {l}c:
    ds_read_b32 v{vt}, v{vaddr}
    s_waitcnt lgkmcnt(0)
    v_readfirstlane_b32 s45, v{vt}
    s_sub_u32 s44, s44, 1
    s_cbranch_scc1 {d}
    s_cmp_lt_u32 s45, {val}
    s_cbranch_scc1 {l}
    {d}:
    """)
def hello_check(vt):
    if not OPT["local"]: return
    poll(sFH, vt, vt + 2, preloaded=True, hello=True)
    A(f"""
    s_getreg_b32 s48, hwreg(HW_REG_XCC_ID, 0, 4)
    s_lshl_b32 s48, s48, 28
    v_cmp_ne_u32 vcc, s48, v{vt+1}
    s_cmp_eq_u64 vcc, 0
    s_cselect_b32 {sLOC}, {1 if OPT['local'] == 1 else 0}, 0
    """)
NLL = 1 if OPT["local"] else 0
def late_loads(vt):
    if not OPT["local"]: return
    A(f"""
    v_and_b32 v{vt+2}, 7, v1
    v_lshlrev_b32 v{vt+2}, 7, v{vt+2}
    buffer_load_dwordx2 {vr(vt,2)}, v{vt+2}, {srd(SWS)}, {sFH} offen sc1
    """)
def build_mask(base, far, vz, vinf):
    out = [f"v_mov_b32 v{vz}, 0", f"v_mov_b32 v{vinf}, 0xff800000"]
    for r in range(16):
        m = 8 * (r >> 2) + (r & 3)
        lo, hi = (0xFFFFFFFF << m) & 0xFFFFFFFF, (0xFFFFFFFF << (m + 4)) & 0xFFFFFFFF
        sp = 48 + 2 * (r & 1)
        out += [f"s_mov_b32 s{sp}, {hex(lo)}", f"s_mov_b32 s{sp+1}, {hex(hi)}"]
        out.append(f"v_cndmask_b32 v{base+r}, v{vz if far else vinf}, v{vinf if far else vz}, s[{sp}:{sp+1}]")
    return out

SPLIT = OPT["split"]
QF = [120, 124]; S = [16, 32]; P = 48; O = [56, 128]; VH = 144
VL16 = 211; MK = 212; VF = [228, 236]; KF = [244, 248]; VKA, VVA, VWOA, VT3 = 252, 253, 254, 255
VF1A = 7
def ones(base): return [f"v_mov_b64 {vr(base+i,2)}, {ONES}" for i in range(0, 8, 2)]
def att_setup(far, t0, t1):
    A(f"""
    s_and_b32 {sHEAD}, {sWAVE}, 3
    s_lshr_b32 {sQT}, {sWAVE}, 2
    s_mov_b32 s60, 0x0000ffff
    s_mov_b32 s61, 0x0000ffff
    s_mov_b32 s100, 0x3f803f80
    s_mov_b32 s101, 0x3f803f80
    v_and_b32 v{VVA}, 15, v1
    v_lshlrev_b32 v{VVA}, 4, v{VVA}
    v_lshrrev_b32 v{t0}, 5, v1
    v_lshl_add_u32 v{VVA}, v{t0}, 8, v{VVA}
    v_add_u32 v{VVA}, 1024, v{VVA}
    s_lshl_b32 s45, {sHEAD}, 12
    s_add_u32 s45, s45, {L_X}
    v_add_u32 v{VKA}, s45, v{VL16}
    v_lshrrev_b32 v{VWOA}, 3, v1
    v_lshlrev_b32 v{VWOA}, 10, v{VWOA}
    v_lshrrev_b32 v{t0}, 2, v1
    v_and_b32 v{VF1A}, 3, v{t0}
    v_and_b32 v{t0}, 4, v{t0}
    v_and_b32 v{t1}, 7, v1
    v_xor_b32 v{t0}, v{t0}, v{t1}
    v_lshl_add_u32 v{VWOA}, v{t0}, 4, v{VWOA}
    s_lshl_b32 s48, {sHEAD}, 11
    s_mul_i32 s45, {sHEAD}, 768
    s_add_u32 s45, s45, {L_MB}
    v_mov_b32 v{VT3}, s45
    s_max_u32 s45, {sRB}, 1
    s_sub_u32 s45, s45, 1
    v_min_u32 v{VF1A}, s45, v{VF1A}
    v_sub_u32 v{VF1A}, 3, v{VF1A}
    v_lshlrev_b32 v{VF1A}, 5, v{VF1A}
    v_and_b32 v{t1}, 3, v1
    v_lshl_add_u32 v{VF1A}, v{t1}, 3, v{VF1A}
    s_lshl_b32 s49, {sHG}, 5
    s_add_u32 s49, s49, {sRB}
    s_lshl_b32 s45, s49, 5
    s_add_u32 {sF1P}, s45, {F1 - 128}
    s_lshl_b32 {sKVB}, s49, 14
    s_add_u32 {sKVB}, {sKVB}, s48
    s_add_u32 {sKVB}, {sKVB}, {WS_KV}
    s_lshl_b32 s3, {sRB}, 14
    s_sub_u32 s3, {sKVB}, s3
    s_lshl_b32 {sK0}, {sRB}, 1
    s_sub_u32 {sK0}, 8, {sK0}
    s_max_i32 {sK0}, {sK0}, 0
    ; o goes into this workgroup's own (already consumed) rows of the ur array: [rb][hg][wave][1KB]
    s_lshl_b32 {sOOFF}, {sRB}, 3
    s_add_u32 {sOOFF}, {sOOFF}, {sHG}
    s_lshl_b32 {sOOFF}, {sOOFF}, 3
    s_add_u32 {sOOFF}, {sOOFF}, {sWAVE}
    s_lshl_b32 {sOOFF}, {sOOFF}, 10
    s_add_u32 {sOOFF}, {sOOFF}, {WS_UR}
    s_lshl_b32 {sF2}, {sRB}, 10
    s_add_u32 {sF2}, {sF2}, {F2}
    s_add_u32 {sFH}, {sF2}, 64
    s_lshl_b32 {sWOG}, {sWAVE}, 16
    s_lshl_b32 s45, {sHG}, 7
    s_add_u32 {sWOG}, {sWOG}, s45
    s_lshl_b32 {sWOL}, {sWAVE}, 13
    """)
    mksrd(SWO, P_WO, 0x80000)
    for l in build_mask(MK, far, t0, t1) + ones(VF[0]) + ones(VF[1]): A(l)
def tile_loads(kap, kreg, vreg):
    return [f"s_sub_u32 s45, {sKVB}, {(8-kap)*8192}\ns_max_u32 s45, s45, s3\nbuffer_load_dwordx4 {vr(kreg,4)}, v{VL16}, {srd(SWS)}, s45 offen sc1",
            f"s_sub_u32 s45, {sKVB}, {(8-kap)*8192}\ns_max_u32 s45, s45, s3\ns_mov_b64 exec, {VMASK}\nbuffer_load_dwordx4 {vr(vreg,4)}, v{VVA}, {srd(SWS)}, s45 offen sc1\n"
            f"buffer_load_dwordx4 {vr(vreg+4,4)}, v{VVA}, {srd(SWS)}, s45 offen offset:512 sc1\ns_mov_b64 exec, -1"]
def wo_dma(i):
    A(f"s_add_u32 m0, {sWOL}, {L_WO + 1024*i}\ns_add_u32 s45, {sWOG}, {8192*i}\nbuffer_load_dwordx4 v{VWOA}, {srd(SWO)}, s45 offen lds")
def f1_pre(): A(f"buffer_load_dwordx2 v[4:5], v{VF1A}, {srd(SWS)}, {sF1P} offen sc1")

def att_run(items, regs, hooks, exit_label):
    seen = set(); first_o = [True, True]
    def smm(i):
        k, qt, m = items[i]
        if k not in seen:
            seen.add(k)
            if ('k', k) in hooks: hooks[('k', k)]()
        A(f"{MF32} {vr(S[i&1],16)}, {vr(regs[k][0],4)}, {vr(QF[qt],4)}, {vr(MK,16) if m else '0'}")
    smm(0)
    for i, (k, qt, m) in enumerate(items):
        sb = S[i & 1]; vb = regs[k][1]
        late = i + 1 < len(items) and items[i + 1][0] not in seen and ('k', items[i + 1][0]) in hooks
        if i + 1 < len(items) and not late: smm(i + 1)
        if ('i', i) in hooks: hooks[('i', i)]()
        for e in range(8): A(f"v_exp_f32 v{sb+e}, v{sb+e}")
        for e in range(4): A(f"v_cvt_pk_bf16_f32 v{P+e}, v{sb+2*e}, v{sb+2*e+1}")
        for e in range(8, 10): A(f"v_exp_f32 v{sb+e}, v{sb+e}")
        c = '0' if first_o[qt] else vr(O[qt], 16); first_o[qt] = False
        A(f"{MF32} {vr(O[qt],16)}, {vr(vb,4)}, {vr(P,4)}, {c}")
        if ('m', i) in hooks: hooks[('m', i)]()
        for e in range(10, 12): A(f"v_exp_f32 v{sb+e}, v{sb+e}")
        if late: smm(i + 1)
        for e in range(12, 16): A(f"v_exp_f32 v{sb+e}, v{sb+e}")
        for e in range(4, 8): A(f"v_cvt_pk_bf16_f32 v{P+e}, v{sb+2*e}, v{sb+2*e+1}")
        lastofk = i + 1 == len(items) or items[i + 1][0] != k
        ex = lastofk and i + 1 < len(items) and k % 2 == 0
        if ex: A(f"s_cmp_eq_u32 {sK0}, {k}")
        A(f"{MF32} {vr(O[qt],16)}, {vr(vb+4,4)}, {vr(P+4,4)}, {vr(O[qt],16)}")
        if ex: A(f"s_cbranch_scc1 {exit_label(i + 1)}")
def exchange(qt):
    so, ro = (0, 2048) if qt == 0 else (2048, 0)
    A(f"""
    v_lshl_add_u32 v25, v1, 2, v{VT3}
    v_mov_b32 v27, {L_NL}
    ds_write_b128 v{VKA}, {vr(O[1-qt],4)} offset:{so}
    ds_write_b128 v{VKA}, {vr(O[1-qt]+4,4)} offset:{so+1024}
    ds_write_b32 v25, v{O[1-qt]+8} offset:{256 + 256*qt}
    s_waitcnt {'vmcnt(0) ' if qt == 0 else ''}lgkmcnt(0)
    s_barrier
    """)
    stamp("bx")
    A(f"""
    ds_read_b32 v26, v27 offset:8
    ds_read_b32 v24, v25 offset:{512 - 256*qt}
    ds_read_b128 v[16:19], v{VKA} offset:{ro}
    ds_read_b128 v[20:23], v{VKA} offset:{ro+1024}
    s_mov_b32 s45, {f32(2.0**-30)}
    s_mov_b32 s48, {f32(2.0**30)}
    s_waitcnt lgkmcnt(2)
    v_add_f32 v{O[0]+8}, v{O[qt]+8}, v24
    v_rcp_f32 v{O[0]+10}, v{O[0]+8}
    v_cmp_nlt_f32 vcc, s45, v{O[0]+8}
    v_cmp_ngt_f32 s[50:51], s48, v{O[0]+8}
    v_readfirstlane_b32 {sLOC}, v26
    s_waitcnt lgkmcnt(0)
    """)
    for i in range(0, 8, 2): A(f"v_pk_add_f32 {vr(O[0]+i,2)}, {vr(O[qt]+i,2)}, {vr(16+i,2)}")

A(f"""
s_cmp_ge_u32 s2, 256
s_cbranch_scc1 L_END
s_load_dwordx16 s[64:79], s[0:1], 0
s_load_dwordx8 s[80:87], s[0:1], 64
s_load_dwordx2 s[88:89], s[0:1], 96
s_memrealtime s[46:47]
v_lshrrev_b32 v3, 6, v0
v_and_b32 v1, 63, v0
v_readfirstlane_b32 {sWAVE}, v3
v_mov_b32 v2, 0
s_add_u32 {sCG}, s2, {OPT.get('cgs', 0)}
s_and_b32 {sCG}, {sCG}, 7
s_lshr_b32 {sTB}, s2, 3
s_lshl_b32 {sRB}, {sCG}, 2
s_lshr_b32 s44, s2, 6
s_add_u32 {sRB}, {sRB}, s44
s_and_b32 {sHG}, {sTB}, 7
s_add_u32 {sROT}, {sHG}, {sCG}
s_and_b32 {sROT}, {sROT}, 7
v_lshrrev_b32 v8, 3, v1
v_and_b32 v9, 7, v1
v_lshlrev_b32 v{VL16}, 4, v1
""")
if OPT["cpf"]:
    A(f"""
    s_getpc_b64 s[92:93]
    s_lshl_b32 s44, {sTB}, 3
    s_add_u32 s44, s44, {sWAVE}
    s_lshl_b32 s44, s44, 7
    s_min_u32 s44, s44, {OPT['span']}
    v_mov_b32 v3, s44
    global_load_dword v3, v3, s[92:93]
    """)
A(f"""
s_cmp_ge_u32 {sWAVE}, 4
s_cbranch_scc1 L_LOADER
""")
stamp("start")
gHP, gRT, gKVS, gWQG, gWQL, gUS, gF3, gF1, gXI, gOK = "s4", "s5", "s6", "s7", "s24", "s25", "s26", "s27", "s52", "s91"
VXA, VXB, VWA, VWB, VQA = 200, 204, 208, 209, 210
VWQ, VST, VNON, VPF = 244, 245, 246, 249
VUS, VTR, VSK = 136, 137, 138
A(f"""
v_lshlrev_b32 v10, 10, v8
v_lshl_add_u32 v10, v9, 4, v10
s_lshl_b32 s44, {sTB}, 16
s_lshl_b32 s45, {sCG}, 7
s_add_u32 s44, s44, s45
v_add_u32 v10, s44, v10
v_subrev_u32 v11, 8192, v10
v_and_b32 v14, 15, v1
s_lshl_b32 s44, {sCG}, 6
s_lshl_b32 s45, {sWAVE}, 4
s_add_u32 s50, s44, s45
v_add_u32 v15, s50, v9
v_lshlrev_b32 v12, 3, v15
s_lshl_b32 s45, {sWAVE}, 14
s_lshl_b32 {gWQL}, {sWAVE}, 11
s_add_u32 m0, {gWQL}, {L_KT + 1024}
s_add_u32 s49, s45, 8192
; lines of W with (addr>>7)&7 == 3: 28 workgroups x 4 waves x 14 lines
s_lshr_b32 s48, {sTB}, 3
s_sub_u32 s48, {sTB}, s48
s_cmp_gt_u32 {sHG}, 3
s_subb_u32 s48, s48, 0
s_lshl_b32 s48, s48, 2
s_add_u32 s48, s48, {sWAVE}
s_mul_i32 s48, s48, 14
v_add_u32 v19, s48, v1
v_min_u32 v19, 1535, v19
v_lshlrev_b32 v19, 10, v19
v_add_u32 v19, 384, v19
s_cmp_eq_u32 {sHG}, 3
s_cselect_b32 s50, 1, 0x3fff
s_mov_b32 s51, 0
s_waitcnt lgkmcnt(0)
""")
if OPT.get("echo"): A("s_mov_b32 s96, s46\ns_mov_b32 s97, 0")
stamp("ptrs")
if OPT["p3first"]: A(f"s_mov_b64 exec, s[50:51]\nglobal_load_dword v3, v19, {pp(P_W)}\ns_mov_b64 exec, -1")
mksrd(SK, P_K, 0x200000)
A(f"buffer_load_dwordx4 v10, {srd(SK)}, s45 offen lds\ns_add_u32 m0, {gWQL}, {L_KT + 2048}")
mksrd(SV, P_V, 0x200000)
A(f"""
buffer_load_dwordx4 v10, {srd(SK)}, s49 offen lds
s_add_u32 m0, {gWQL}, {L_VT}
s_nop 0
buffer_load_dwordx4 v10, {srd(SV)}, s45 offen lds
s_add_u32 m0, {gWQL}, {L_VT + 1024}
s_cmp_eq_u32 {sWAVE}, 2
buffer_load_dwordx4 v10, {srd(SV)}, s49 offen lds
s_cbranch_scc0 L_PFA
s_mov_b32 m0, {L_KT}
s_nop 0
buffer_load_dwordx4 v11, {srd(SK)}, 0 offen lds
L_PFA:
global_load_dwordx2 v[132:133], v12, {pp(P_SK)}
global_load_dwordx2 v[134:135], v12, {pp(P_SK)} offset:64
s_cmp_eq_u32 {sWAVE}, 0
s_cbranch_scc0 L_PFB
s_cmp_ge_u32 s2, 8
s_cbranch_scc1 L_PFB
s_or_b32 s46, s46, 1
v_mov_b32 v24, s46
v_mov_b32 v25, s47
v_mov_b32 v26, 0
v_mov_b32 v27, 0
s_mov_b64 exec, 1
global_atomic_cmpswap_x2 v26, v[24:27], {pp(P_DBG)} sc1
s_mov_b64 exec, -1
L_PFB:
s_cmp_eq_u32 {sWAVE}, 1
s_cbranch_scc0 L_PFC
s_lshl_b32 s45, {sROT}, 7
v_add_u32 v22, s45, v{VL16}
v_and_b32 v22, 1023, v22
s_mov_b32 m0, {L_GW}
s_nop 0
global_load_lds_dwordx4 v22, {pp(P_GW)}
L_PFC:
""")
HBLK = f"""
; h rows of this workgroup's two channels (aligned copy): wave w loads 2KB
s_lshl_b32 s44, {sCG}, 18
s_lshl_b32 s45, {sTB}, 13
s_add_u32 s44, s44, s45
s_add_u32 s44, s44, {gWQL}
v_add_u32 v22, s44, v{VL16}
s_lshr_b32 s45, {sWAVE}, 1
s_mul_i32 s45, s45, {2*HSTR - 4096}
s_add_u32 s45, s45, {gWQL}
s_add_u32 m0, s45, {L_H}
s_nop 0
global_load_lds_dwordx4 v22, {pp(P_H)}
global_load_lds_dwordx4 v22, {pp(P_H)} offset:1024
; wave 3: lines of W with (addr>>7)&7 == 3; wave 2: a share of W_q; wave 1: a share of wo and its slow lines
v_min_u32 v19, 47, v1
v_lshlrev_b32 v19, 10, v19
s_mul_i32 s48, {sTB}, {48*1024}
s_add_u32 s48, s48, 384
v_add_u32 v19, s48, v19
v_and_b32 v20, 1, v8
v_mul_u32_u24 v20, 3072, v20
v_lshl_add_u32 v20, v9, 7, v20
s_mul_i32 s48, s2, 6144
v_add_u32 v20, s48, v20
s_cmp_eq_u32 {sWAVE}, 2
s_cselect_b64 vcc, -1, 0
v_cndmask_b32 v19, v19, v20, vcc
s_lshl_b32 s48, s2, 11
v_lshl_add_u32 v20, v14, 7, s48
s_lshl_b32 s48, {sTB}, 14
s_add_u32 s48, s48, 384
v_lshl_add_u32 v21, v14, 10, s48
v_cmp_gt_u32 vcc, 32, v1
s_cmp_eq_u32 {sWAVE}, 1
s_cselect_b32 s48, s{P_WO}, s{P_W}
s_cselect_b32 s49, s{P_WO+1}, s{P_W+1}
v_cndmask_b32 v20, v20, v21, vcc
s_cselect_b64 vcc, -1, 0
v_cndmask_b32 v19, v19, v20, vcc
s_bitcmp1_b32 {OPT.get('pfm', 6 if OPT['p3first'] else 14)}, {sWAVE}
s_cselect_b64 exec, -1, 1
global_load_dword v{VPF}, v19, s[48:49]
s_mov_b64 exec, -1
"""
if not OPT["hlate"]: A(HBLK)
A(f"""
s_and_b32 {gHP}, {sWAVE}, 1
s_lshr_b32 {gRT}, {sWAVE}, 1
""")
mksrd(SWS, P_WS, WS_SIZE); mksrd(SW, P_W, 0x180000)
A(f"""
v_and_b32 v16, 31, v1
v_mov_b32 v{VNON+2}, 0
v_lshrrev_b32 v23, 5, v1             ; hh
v_lshrrev_b32 v34, 4, v16
v_mul_u32_u24 v34, 6144, v34
v_lshl_add_u32 v34, v14, 7, v34
s_mul_i32 s45, {gRT}, 12288
v_add_u32 v34, s45, v34
v_lshrrev_b32 v35, 1, v14
v_xor_b32 v35, v35, v23
""")
for s_ in range(4):
    A(f"v_xor_b32 v36, {2*s_}, v35\nv_lshl_add_u32 v{VXA+s_}, v36, 4, v34\nv_add_u32 v{VXB+s_}, 49152, v{VXA+s_}")
A(f"""
v_lshrrev_b32 v36, 2, v1
v_and_b32 v36, 3, v36                ; r
v_lshrrev_b32 v37, 1, v36
v_xor_b32 v37, {gHP}, v37
v_lshlrev_b32 v37, 6, v37
v_lshl_add_u32 v37, v36, 7, v37
v_lshrrev_b32 v28, 4, v1             ; g
v_and_b32 v29, 1, v28
v_lshl_add_u32 v37, v29, 5, v37
v_and_b32 v30, 3, v1                 ; c'
v_lshl_add_u32 v37, v30, 3, v37
v_lshl_add_u32 v{VQA}, v23, 10, v37
v_lshl_add_u32 v37, v23, 11, v37
v_add_u32 v{VWA}, 2048, v37
v_add_u32 v{VWB}, {2048 + 49152}, v37
v_lshl_add_u32 v37, v28, 3, v36
v_lshrrev_b32 v13, 1, v30
v_lshl_add_u32 v37, v13, 5, v37
v_lshlrev_b32 v37, 7, v37
v_and_b32 v13, 1, v1
v_lshl_add_u32 v37, v13, 3, v37
s_lshl_b32 s45, {sWAVE}, 5
s_add_u32 s45, s45, {L_KT}
v_add_u32 v{VTR}, s45, v37
v_lshlrev_b32 v12, 12, v15
v_and_b32 v13, 1, v8
v_lshl_add_u32 v13, v13, 2, v28      ; octet = g + 4*((l>>3)&1)
v_lshlrev_b32 v13, 4, v13
v_sub_u32 v12, v12, v13
v_add_u32 v{VUS}, 112, v12
s_lshl_b32 s45, {sTB}, 7
s_sub_u32 {gUS}, {WS_UR + 4080 - 112}, s45
v_lshlrev_b32 v31, 2, v29
v_xor_b32 v31, v9, v31
v_mul_u32_u24 v{VWQ}, 3072, v8
v_lshl_add_u32 v{VWQ}, v31, 4, v{VWQ}
""")
if OPT["hlate"]: A(HBLK)
att_setup(False, 38, 39)
A(f"""
v_lshl_add_u32 v{VST}, v29, 11, v{VVA}
s_lshl_b32 s49, {sHG}, 5
s_add_u32 s49, s49, {sRB}
s_lshl_b32 {gF1}, s49, 2
s_add_u32 {gF1}, {gF1}, {sWAVE}
s_lshl_b32 {gF1}, {gF1}, 3
s_add_u32 {gF1}, {gF1}, {F1}
s_lshl_b32 s45, {gRT}, 13
s_lshl_b32 s48, {gHP}, 12
s_add_u32 s45, s45, s48
s_lshl_b32 {gKVS}, s49, 14
s_add_u32 {gKVS}, {gKVS}, s45
s_add_u32 {gKVS}, {gKVS}, {WS_KV}
s_add_u32 s49, s45, {L_OWN}
v_add_u32 v4, s49, v{VL16}
v_add_u32 v5, s49, v{VST}
s_lshr_b32 s45, s45, 1
s_add_u32 s45, s45, {L_Q}
v_add_u32 v6, s45, v{VL16}
s_mul_i32 {gWQG}, {sWAVE}, 49152
s_lshl_b32 s45, {sHG}, 7
s_add_u32 {gWQG}, {gWQG}, s45
s_lshl_b32 {gF3}, {sCG}, 2
s_add_u32 {gF3}, {gF3}, {sWAVE}
s_lshl_b32 {gF3}, {gF3}, 5
s_add_u32 {gF3}, {gF3}, {sTB}
s_lshl_b32 {gF3}, {gF3}, 3
s_add_u32 {gF3}, {gF3}, {F3}
s_sub_u32 {gXI}, 8, {sCG}
s_and_b32 {gXI}, {gXI}, 7
s_lshl_b32 {gXI}, {gXI}, 4
s_lshl_b32 s45, {gHP}, 3
s_add_u32 {gXI}, {gXI}, s45
s_mov_b32 {sF4}, {sF1P}
s_lshl_b32 s45, {gRT}, 7
s_add_u32 s45, s45, {L_Z}
v_lshl_add_u32 v250, v16, 2, s45
""")
gOS0, gOS1 = "s70", "s71"
FWO, FY, FO, FST = 8, 9, 10, 11
FADDR = f"""
v_lshrrev_b32 v12, 5, v1
v_lshrrev_b32 v13, 2, v1
v_and_b32 v13, 3, v13
v_lshrrev_b32 v14, 1, v13
v_xor_b32 v14, {gHP}, v14
v_lshlrev_b32 v14, 6, v14
v_lshl_add_u32 v15, v12, 2, v13
v_lshl_add_u32 v14, v15, 7, v14
v_and_b32 v15, 1, v1
v_lshl_add_u32 v14, v15, 5, v14
v_lshrrev_b32 v15, 1, v1
v_and_b32 v15, 1, v15
v_lshl_add_u32 v14, v15, 3, v14
v_lshrrev_b32 v15, 4, v1
v_and_b32 v15, 1, v15
v_lshl_add_u32 v{FWO}, v15, 4, v14
v_lshl_add_u32 v14, v12, 4, v13
v_lshlrev_b32 v14, 7, v14
v_lshl_add_u32 v14, v15, 5, v14
v_and_b32 v13, 3, v1
v_lshl_add_u32 v14, v13, 3, v14
s_lshl_b32 s45, {gHP}, 12
s_lshl_b32 s48, {gRT}, 6
s_add_u32 s45, s45, s48
s_add_u32 s45, s45, {L_Y}
v_add_u32 v{FY}, s45, v14
s_lshl_b32 s45, {gRT}, 12
s_add_u32 s45, s45, {L_O}
v_add_u32 v{FO}, s45, v{VL16}
v_and_b32 v13, 15, v1
v_lshlrev_b32 v13, 10, v13
v_lshl_add_u32 v13, v12, 5, v13
v_lshl_add_u32 v{FST}, v15, 4, v13
s_lshl_b32 s45, {sRB}, 16
s_lshl_b32 s48, {gRT}, 15
s_add_u32 s45, s45, s48
s_lshl_b32 s48, {sHG}, 7
s_add_u32 s45, s45, s48
s_lshl_b32 s48, {gHP}, 6
s_add_u32 {gOS0}, s45, s48
s_add_u32 {gOS1}, {gOS0}, 16384
"""
A(FADDR)
A(f"""
s_lshl_b32 s45, {sHEAD}, 11
s_add_u32 s45, s45, {L_OWN}
v_add_u32 v12, s45, v{VL16}
v_add_u32 v13, s45, v{VVA}
s_lshl_b32 s45, {sHEAD}, 10
s_add_u32 s45, s45, {L_Q}
v_add_u32 v14, s45, v{VL16}
s_lshl_b32 s45, {sWAVE}, 11
s_add_u32 s45, s45, {L_X}
v_add_u32 v251, s45, v{VL16}
ds_write_b128 v251, v[8:11]
ds_write_b128 v251, v[12:15] offset:1024
""")
A("s_waitcnt vmcnt(3) lgkmcnt(0)")
stamp("kvland")
for i in range(4): A(f"v_alignbit_b32 v{VSK+i}, v{132+i}, v{132+i}, 16")
A("s_barrier")
stamp("bk")
XF = lambda kk: 72 + 4 * kk
for o in range(2):
    kb, vb = 144 + 10 * o, 150 + 10 * o
    for q in range(3): A(f"ds_read_b64_tr_b16 {vr(kb+2*q,2)}, v{VTR} offset:{o*16 + (4+4*q)*128}")
    for q in range(2): A(f"ds_read_b64_tr_b16 {vr(vb+2*q,2)}, v{VTR} offset:{9216 + o*16 + 4*q*128}")
for o in range(2):
    kb, vb = 144 + 10 * o, 150 + 10 * o
    K0, V0, U0 = 164, 176, 184
    A(f"s_waitcnt lgkmcnt({5 - 5*o})")
    for i in range(5): A(f"v_alignbit_b32 v{K0+i}, v{kb+i+1}, v{kb+i}, 16")
    src = lambda t, far: (kb + (t + 3) // 2 - far) if t % 2 else (K0 + t // 2 + 1 - far)
    for t in range(8): A(f"v_dot2_f32_bf16 v{U0+t}, v{src(t,0)}, v{VSK+2*o}, 0")
    for t in range(8): A(f"v_dot2_f32_bf16 v{U0+t}, v{src(t,1)}, v{VSK+2*o+1}, v{U0+t}")
    for e in range(8):
        A(f"v_lshlrev_b32 v{V0+e}, 16, v{vb+e//2}" if e % 2 == 0 else f"v_and_b32 v{V0+e}, 0xffff0000, v{vb+e//2}")
    for t in range(0, 8, 2): A(f"v_pk_mul_f32 {vr(U0+t,2)}, {vr(U0+t,2)}, {vr(V0+t,2)}")
    ob = 192 + 4 * o
    for d in range(4): A(f"v_cvt_pk_bf16_f32 v{ob+d}, v{U0+7-2*d}, v{U0+6-2*d}")
A(f"s_add_u32 s45, {gUS}, 32768")
for o in range(2):
    A(f"buffer_store_dwordx4 {vr(192+4*o,4)}, v{VUS}, {srd(SWS)}, {'s45' if o else gUS} offen sc1")
A(f"global_load_dwordx2 {vr(VNON,2)}, v{VNON+2}, {pp(P_DBG)} sc1")
A("s_waitcnt vmcnt(4)")
stamp("predone")

AK, AV = 8, 24
WF = lambda s_: 40 + 8 * s_
def gemm_reads(c, s_):
    sl = SLOTS[c]
    xa, wa, o = (VXA + s_, VWA, sl) if sl < 49152 else (VXB + s_, VWB, sl - 49152)
    r = [f"ds_read_b128 {vr(XF(4*c+s_),4)}, v{xa} offset:{o}"]
    for sec in range(2):
        for half in range(2):
            r.append(f"ds_read_b64_tr_b16 {vr(WF(s_)+4*sec+2*half,2)}, v{wa} offset:{o + s_*6144 + sec*1024 + half*512}")
    return r
def gemm_ms(c, s_):
    first = (c == 0 and s_ == 0)
    x = vr(XF(4*c+s_), 4)
    return [f"{MF32} {vr(AK,16)}, {vr(WF(s_),4)}, {x}, {'0' if first else vr(AK,16)}",
            f"{MF32} {vr(AV,16)}, {x}, {vr(WF(s_)+4,4)}, {'0' if first else vr(AV,16)}"]
for c in range(8):
    stamp(f"p{c}"); A("s_barrier"); stamp(f"b{c}")
    R = sum((gemm_reads(c, s_) for s_ in range(4)), [])
    km = [gemm_ms(c, s_) for s_ in range(4)]
    for r in R[:10]: A(r)
    A("s_waitcnt lgkmcnt(5)"); A(km[0][0])
    for r in R[10:13]: A(r)
    A(km[0][1])
    for r in R[13:16]: A(r)
    A("s_waitcnt lgkmcnt(6)"); A(km[1][0])
    for r in R[16:18]: A(r)
    A(km[1][1])
    for r in R[18:20]: A(r)
    A("s_waitcnt lgkmcnt(5)"); A(km[2][0])
    if c < 7:
        A(km[2][1])
        if c == OPT["f3c"]:
            A("s_waitcnt vmcnt(0)")
            take_nonce(VNON)
            flag_store(gF3, VNON)
            if OPT["local"]:
                A(f"""
                s_cmp_lg_u32 {sWAVE}, 3
                s_cbranch_scc1 L_NOHELLO
                s_getreg_b32 s48, hwreg(HW_REG_XCC_ID, 0, 4)
                s_lshl_b32 s48, s48, 28
                s_xor_b32 s48, s48, s43
                s_lshl_b32 s45, {sHG}, 7
                s_add_u32 s45, s45, {sFH}
                """)
                flag_store("s45", VNON, hi="s48")
                A(f"v_mov_b32 v3, {L_NL}\nv_mov_b32 v{VNON+1}, s43\nds_write_b64 v3, {vr(VNON,2)}")
                A("L_NOHELLO:")
        A("s_waitcnt lgkmcnt(0)"); A(km[3][0]); A(km[3][1])
        if c == OPT.get("hc", 4):
            A(f"s_cmp_lg_u32 {sWAVE}, 3\ns_cbranch_scc1 L_NOH2"); late_loads(VNON); A("L_NOH2:")
    else:
        A("s_waitcnt lgkmcnt(2)"); A(km[3][0]); A(km[2][1]); A("s_waitcnt lgkmcnt(0)"); A(km[3][1])
KP = 56
for i in range(8): A(f"v_cvt_pk_bf16_f32 v{KP+i}, v{AK+2*i}, v{AK+2*i+1}")
A(f"buffer_store_dwordx4 {vr(KP,4)}, v{VL16}, {srd(SWS)}, {gKVS} offen sc1")
A(f"buffer_store_dwordx4 {vr(KP+4,4)}, v{VL16}, {srd(SWS)}, {gKVS} offen offset:2048 sc1")
for i in range(8): A(f"v_cvt_pk_bf16_f32 v{KP+8+i}, v{AV+2*i}, v{AV+2*i+1}")
A(f"buffer_store_dwordx4 {vr(KP+8,4)}, v{VST}, {srd(SWS)}, {gKVS} offen sc1")
A(f"buffer_store_dwordx4 {vr(KP+12,4)}, v{VST}, {srd(SWS)}, {gKVS} offen offset:512 sc1")
stamp("kvend")
LQ = OPT["lq"]; G1 = OPT["g1"]; NA = LQ + G1
def g_wq(lc):
    A(f"""
    s_add_u32 s45, {sROT}, {lc}
    s_and_b32 s45, s45, 7
    s_mul_i32 s48, s45, 196608
    s_add_u32 s48, s48, {gWQG}
    s_add_u32 m0, {gWQL}, {lc*8192}
    s_add_u32 s50, s48, 24576
    buffer_load_dwordx4 v{VWQ}, {srd(SW)}, s48 offen lds
    s_add_u32 m0, {gWQL}, {lc*8192 + 1024}
    s_nop 0
    buffer_load_dwordx4 v{VWQ}, {srd(SW)}, s50 offen lds
    """)
XK = 200
A(f"ds_read_b128 v[8:11], v251\nds_read_b128 v[12:15], v251 offset:1024")
A(f"s_set_gpr_idx_on {gXI}, gpr_idx(SRC0)\ns_nop 1")
for i in range(8): A(f"v_mov_b32 v{XK+i}, v{XF(0)+i}")
A("s_set_gpr_idx_off")
stamp("pa")
A("s_barrier")
stamp("ba")
NB4 = 8 if OPT["gall"] else NA
for lc in range(LQ, NB4): g_wq(lc)
A(f"""
ds_read_b32 v208, v250
ds_read_b32 v209, v250 offset:256
ds_write_b128 v4, {vr(KP,4)}
ds_write_b128 v4, {vr(KP+4,4)} offset:2048
ds_write_b128 v5, {vr(KP+8,4)}
ds_write_b128 v5, {vr(KP+12,4)} offset:512
""")
for i in range(4): A(f"v_permlane32_swap_b32 v{XK+i}, v{XK+4+i}")
assert OPT["local"]
A(f"s_cmp_lg_u32 {sWAVE}, 3\ns_cbranch_scc1 L_NOH3\ns_waitcnt vmcnt({4 + 2*(NB4-LQ)})"); hello_check(VNON)
A(f"v_mov_b32 v{VNON}, {sLOC}\nds_write_b32 v3, v{VNON} offset:8\ns_waitcnt lgkmcnt(0)\nL_NOH3:")
A(f"s_waitcnt vmcnt({2*(NB4-LQ)})")
flag_store(gF1, VNON)
stamp("f1pub")
for lc in range(NB4, 8): g_wq(lc)
A(f"s_waitcnt vmcnt({1 + 2*(8-NA)}) lgkmcnt(0)")
stamp("pw")
A("s_barrier")
stamp("bw")
AQ = 16
QW = lambda i: [32, 36, 40, 44, 48, 52, 60, 64][i % 8]
LA = 6
GT = {k: (72 + 12 * i, 76 + 12 * i) if i < 4 else (148, 152) for i, k in enumerate(range(7, SPLIT - 1, -1))}
def qpart(k0, k1, hooks):
    def qread(kk):
        A(f"ds_read_b64_tr_b16 {vr(QW(kk),2)}, v{VQA} offset:{kk*2048}\nds_read_b64_tr_b16 {vr(QW(kk)+2,2)}, v{VQA} offset:{kk*2048+512}")
    for kk in range(k0, k0 + LA): qread(kk)
    if 'top' in hooks: hooks['top']()
    for kk in range(k0, k1):
        rem = min(LA - 1, k1 - 1 - kk)
        A(f"s_waitcnt lgkmcnt({2*rem})")
        A(f"{MF32} {vr(AQ,16)}, {vr(QW(kk),4)}, {vr(XF(kk),4)}, {'0' if kk == 0 else vr(AQ,16)}")
        if kk + LA < k1: qread(kk + LA)
        if kk in hooks: hooks[kk]()
gl = sum((tile_loads(k, kr, vv) for k, (kr, vv) in GT.items()), [])
def f1_look(name, again):
    l = A.lab("F1L")
    A(f"""
    s_waitcnt vmcnt(0)
    v_cmp_ne_u64 vcc, {sNON}, v[4:5]
    s_cmp_eq_u32 {sRB}, 0
    s_cselect_b64 vcc, 0, vcc
    s_mov_b32 {gOK}, 1
    s_cbranch_vccz {l}
    s_mov_b32 {gOK}, 0
    """)
    f1_pre()
    A(f"{l}:")
def cond(ls):
    def f():
        l = A.lab("CL")
        A(f"s_cmp_eq_u32 {gOK}, 0\ns_cbranch_scc1 {l}")
        for x in ls: A(x)
        A(f"{l}:")
    return f
F1A = OPT.get("f1a", 20)
def own_rd():
    for t in (1, 0):
        A(f"ds_read_b128 {vr(KF[t],4)}, v12 offset:{t*8192}\ns_mov_b64 exec, {VMASK}\nds_read_b128 {vr(VF[t],4)}, v13 offset:{t*8192}\nds_read_b128 {vr(VF[t]+4,4)}, v13 offset:{t*8192+512}\ns_mov_b64 exec, -1")
qpart(0, 4 * NA, {OPT["f1p"]: f1_pre})
own_rd()
for k, (kr, vv) in GT.items():
    if vv < 120:
        for l in ones(vv): A(l)
A("s_waitcnt vmcnt(1)")
stamp("pw2")
NQ2, NQ3 = OPT["nq2"], OPT["nq3"]; NQC = NQ2 + NQ3
if NQ2:
    f1_look("f1a", True); cond(gl[:NQ2])()
A("s_barrier")
stamp("bw2")
qpart(4 * NA, 32, {})
stamp("qend")
A(f"s_mov_b32 s48, {f32(0.25 * LOG2E)}\ns_mov_b32 s49, s48")
for i in range(0, 16, 2): A(f"v_pk_mul_f32 {vr(AQ+i,2)}, {vr(AQ+i,2)}, s[48:49]")
for i in range(4): A(f"v_cvt_pk_bf16_f32 v{32+i}, v{AQ+2*i}, v{AQ+2*i+1}")
A(f"ds_write_b128 v6, v[32:35]")
for i in range(4, 8): A(f"v_cvt_pk_bf16_f32 v{32+i}, v{AQ+2*i}, v{AQ+2*i+1}")
A(f"ds_write_b128 v6, v[36:39] offset:1024")
if len(gl) > 8:
    for l in ones(152): A(l)
if not NQ2: f1_look("f1a", True)
if NQ3: cond(gl[NQ2:NQC])()
A("s_waitcnt lgkmcnt(0)\ns_barrier")
stamp("bq")
A(f"ds_read_b128 {vr(QF[1],4)}, v14 offset:4096\nds_read_b128 {vr(QF[0],4)}, v14\ns_waitcnt lgkmcnt(0)")
gitems = [(9, 1, 1), (8, 0, 1), (8, 1, 0)] + [(k, qt, 0) for k in range(7, SPLIT - 1, -1) for qt in (0, 1)]
gst = dict(wo=0)
def g_k(k):
    def f():
        A(f"s_waitcnt vmcnt({3*(k - SPLIT) + gst['wo']})")
        if k == 7: stamp("own")
    return f
def g_m(i):
    def f():
        left = len(gitems) - OPT["woe"] - i
        n = -(-(8 - gst["wo"]) // left) if left > 0 else 0
        for _ in range(n): wo_dma(gst["wo"]); gst["wo"] += 1
    return f
def g_rest():
    A(f"s_cmp_lg_u32 {gOK}, 0\ns_cbranch_scc1 L_F1HAVE\ns_waitcnt vmcnt(0)")
    poll(sF1P, 4, VF1A, preloaded=True)
    stamp("f1seen")
    for l in gl[:NQC]: A(l)
    A("L_F1HAVE:")
hooks = {('k', k): g_k(k) for k in GT}
rest = gl[NQC:]
slots = [('i', 0), ('m', 0), ('i', 1), ('m', 1), ('i', 2)]
per = -(-len(rest) // len(slots))
def mk(n):
    def f():
        if n == 0: g_rest()
        for l in rest[n*per:(n+1)*per]: A(l)
    return f
for n, sl in enumerate(slots): hooks[sl] = mk(n)
for i in range(OPT["gw0"], len(gitems)): hooks[('m', i)] = g_m(i)
att_run(gitems, {9: (KF[1], VF[1]), 8: (KF[0], VF[0]), **GT}, hooks, lambda i: f"L_GX{gst['wo']}")
assert gst["wo"] == 8
A("L_GDONE:")
stamp("attend")
exchange(0)
A("s_branch L_ATTFIN")

lLW, lKH, lCH, lXB, lWB, lBLK, lWQL, lYO, lURL, lHL, lF3, lD = "s16", "s17", "s18", "s19", "s20", "s21", "s22", "s23", "s32", "s33", "s34", "s35"
A("L_LOADER:")
stamp("start")
A(f"""
s_sub_u32 {lLW}, {sWAVE}, 4
v_lshrrev_b32 v10, 4, v1
v_xor_b32 v11, v9, v10
v_lshlrev_b32 v12, 10, v8
v_lshl_add_u32 v4, v11, 4, v12       ; x voffset i=0
v_xor_b32 v5, 64, v4
v_and_b32 v10, 1, v10
v_lshlrev_b32 v10, 2, v10
v_xor_b32 v10, v9, v10
v_mul_u32_u24 v6, 3072, v8
v_lshl_add_u32 v6, v10, 4, v6        ; W voffset
s_lshl_b32 {lXB}, {sRB}, 16
s_lshl_b32 s45, {lLW}, 14
s_add_u32 {lXB}, {lXB}, s45
s_mul_i32 {lWB}, {lLW}, 49152
s_lshl_b32 s45, {sHG}, 7
s_add_u32 {lWB}, {lWB}, s45
s_add_u32 {lWB}, {lWB}, 1024
s_mul_i32 {lBLK}, {lLW}, 6144
s_lshl_b32 {lWQL}, {lLW}, 11
s_waitcnt lgkmcnt(0)
""")
if OPT.get("echo"): A("s_mov_b32 s96, s46\ns_mov_b32 s97, 0")
stamp("ptrs")
mksrd(SX, P_X, 0x200000); mksrd(SW, P_W, 0x180000)
vq = []
def issue_chunk(c):
    sl = SLOTS[c]
    A(f"""
    s_lshl_b32 s45, {sROT}, 7
    s_add_u32 s45, s45, {lXB}
    s_mul_i32 s48, {sROT}, 196608
    s_add_u32 s48, s48, {lWB}
    s_add_u32 m0, {lBLK}, {sl}
    s_add_u32 s49, s45, 8192
    buffer_load_dwordx4 v4, {srd(SX)}, s45 offen lds
    s_add_u32 m0, {lBLK}, {sl+1024}
    s_add_u32 s50, s48, 24576
    buffer_load_dwordx4 v5, {srd(SX)}, s49 offen lds
    s_add_u32 m0, {lBLK}, {sl+2048}
    s_add_u32 {sROT}, {sROT}, 1
    buffer_load_dwordx4 v6, {srd(SW)}, s48 offen lds
    buffer_load_dwordx4 v6, {srd(SW)}, s48 offen offset:1024 lds
    s_add_u32 m0, {lBLK}, {sl+4096}
    s_and_b32 {sROT}, {sROT}, 7
    buffer_load_dwordx4 v6, {srd(SW)}, s50 offen lds
    buffer_load_dwordx4 v6, {srd(SW)}, s50 offen offset:1024 lds
    """)
    vq.extend([f"c{c}"] * 6)
def issue_q(lcs):
    for lc in lcs:
        A(f"""
        s_mul_i32 s48, {sROT}, 196608
        s_add_u32 s48, s48, {lWB}
        s_sub_u32 s48, s48, 1024
        s_add_u32 m0, {lWQL}, {lc*8192}
        s_add_u32 s50, s48, 24576
        buffer_load_dwordx4 v6, {srd(SW)}, s48 offen lds
        s_add_u32 m0, {lWQL}, {lc*8192 + 1024}
        s_add_u32 {sROT}, {sROT}, 1
        buffer_load_dwordx4 v6, {srd(SW)}, s50 offen lds
        s_and_b32 {sROT}, {sROT}, 7
        """)
        vq.extend(["q"] * 2)
def vwait(*tags):
    last = max(i for i, t in enumerate(vq) if t in tags)
    A(f"s_waitcnt vmcnt({len(vq) - 1 - last})")
issue_chunk(0)
VCA, VCG, VCD, VDA, VAD, VYS, VFL = 16, 201, 202, 203, 204, 208, 209
ZA, ZX, ZG, ZAD = 24, 40, 48, 56
A(f"""
v_mov_b32 v66, 0
s_and_b32 {lKH}, {lLW}, 1
s_lshr_b32 s52, {lLW}, 1             ; ch
s_lshl_b32 s45, {sCG}, 6
s_lshl_b32 s48, {sTB}, 1
s_add_u32 {lCH}, s45, s48
s_add_u32 {lCH}, {lCH}, s52
s_lshl_b32 s45, {lCH}, 1
v_mov_b32 v71, s45
global_load_ushort v71, v71, {pp(P_D)}
s_lshl_b32 s45, {lCH}, 12
s_lshl_b32 s48, {lKH}, 11
s_add_u32 {lYO}, s45, s48
s_mul_i32 s45, s52, {2*HSTR}
s_add_u32 s45, s45, s48
s_add_u32 s45, s45, {L_H}
v_add_u32 v62, s45, v{VL16}
""")
vq.append("d")
mksrd(SWS, P_WS, WS_SIZE)
A(f"""
v_and_b32 v10, 15, v1
v_lshrrev_b32 v11, 4, v1
v_and_b32 v12, 1, v11
v_mul_u32_u24 v27, {HSTR}, v12
v_lshl_add_u32 v27, v10, 2, v27
s_mul_i32 {lHL}, {lLW}, {HSTR}
s_add_u32 {lHL}, {lHL}, {L_H}
s_sub_u32 s49, {lHL}, 64
v_add_u32 v27, s49, v27
ds_write_b32 v27, v66
s_mul_i32 {lURL}, s52, {URSTR}
s_lshl_b32 s48, {lKH}, 8
s_add_u32 s45, {lURL}, s48
s_add_u32 s45, s45, {L_UR + 4096}
v_lshl_add_u32 v31, v1, 2, s45
ds_write_b32 v31, v66
s_lshl_b32 s45, {lLW}, 7
s_add_u32 {lD}, s45, {L_MISC}
v_lshl_add_u32 v31, v10, 2, {lD}
ds_write_b32 v31, v66
v_add_u32 v31, 1, v10                ; beta
v_and_b32 v67, 1, v31
v_mul_u32_u24 v67, {HSTR}, v67
v_and_b32 v68, 30, v31
v_lshl_add_u32 v68, v11, 3, v68
v_lshl_add_u32 v67, v68, 1, v67
s_mul_i32 s44, s52, {2*HSTR}
s_add_u32 s44, s44, {L_H}
s_add_u32 s45, s44, s48
v_add_u32 v{VCA}, s45, v67
v_add_u32 v{VCA+1}, 1024, v{VCA}
v_add_u32 v{VCA+2}, 2048, v{VCA}
v_add_u32 v{VCA+3}, 3072, v{VCA}
v_lshlrev_b32 v67, 5, v10
v_lshlrev_b32 v69, 4, v11
v_sub_u32 v68, v69, v67
s_add_u32 s49, {lURL}, s48
s_add_u32 s49, s49, {L_UR + 512}
v_add_u32 v{VCG}, s49, v68
v_and_b32 v68, 16, v69
v_sub_u32 v68, v68, v67
s_lshl_b32 s48, {lKH}, 11
s_sub_u32 s45, {lURL}, s48
s_add_u32 s45, s45, {L_UR + 4064 - 1536}
v_add_u32 v{VCD}, s45, v68
s_add_u32 {lURL}, {lURL}, s48
s_add_u32 {lURL}, {lURL}, {L_UR}
v_lshl_add_u32 v68, v12, 3, v31
v_lshlrev_b32 v68, 1, v68
s_sub_u32 s44, s44, 32
v_mov_b32 v69, s44
v_mov_b32 v70, {lD}
v_cmp_gt_u32 vcc, 32, v1
v_lshl_add_u32 v{VYS}, v11, 3, v67
s_and_b32 s45, {lCH}, 63
v_cndmask_b32 v69, v70, v69, vcc
v_add_u32 v{VDA}, v69, v68
s_lshr_b32 s45, s45, 4
s_lshl_b32 s48, {sCG}, 2
s_add_u32 s45, s45, s48
s_lshl_b32 s45, s45, 8
s_add_u32 {lF3}, s45, {F3}
v_and_b32 v68, 31, v1
v_lshlrev_b32 v{VFL}, 3, v68
v_lshl_add_u32 v{ZAD+5}, v68, 2, {lD}
v_add_u32 v{ZAD+5}, {L_Z - L_MISC}, v{ZAD+5}
v_mul_u32_u24 v67, 6144, v12
v_lshl_add_u32 v67, v10, 7, v67
s_mul_i32 s45, {lKH}, 12288
v_add_u32 v67, s45, v67
v_lshrrev_b32 v69, 5, v1
v_lshrrev_b32 v68, 1, v10
v_xor_b32 v68, v68, v69
s_lshl_b32 s45, s52, 2
v_xor_b32 v68, s45, v68
v_lshl_add_u32 v{ZAD}, v68, 4, v67
v_xor_b32 v{ZAD+1}, 32, v{ZAD}
v_add_u32 v{ZAD+2}, 49152, v{ZAD}
v_add_u32 v{ZAD+3}, 49152, v{ZAD+1}
s_lshl_b32 s45, s52, 6
s_add_u32 s45, s45, {L_GW}
v_lshl_add_u32 v{ZAD+4}, v69, 4, s45
s_lshl_b32 s45, {lLW}, 12
s_add_u32 s45, s45, {L_SCR}
v_add_u32 v12, s45, v{VL16}
v_xor_b32 v13, 4096, v12
s_lshl_b32 s45, {lLW}, 10
s_add_u32 s45, s45, {L_Q}
v_add_u32 v14, s45, v{VL16}          ; Q address
v_min_u32 v15, 4, v1
v_mul_u32_u24 v15, 768, v15
v_add_u32 v15, {L_MB}, v15
ds_write_b32 v15, v66
s_lshl_b32 {sF4}, {sCG}, 5
s_add_u32 {sF4}, {sF4}, {sTB}
s_lshl_b32 {sF4}, {sF4}, 2
s_add_u32 {sF4}, {sF4}, {lLW}
s_lshl_b32 {sF4}, {sF4}, 3
s_add_u32 {sF4}, {sF4}, {F4}
""")
att_setup(True, 67, 68)
lF4C, lYG = "s24", "s25"
def y_setup():
    A(f"""
    s_lshl_b32 s45, {sHG}, 10
    s_lshl_b32 s48, {sHEAD}, 8
    s_add_u32 s45, s45, s48
    s_add_u32 {lF4C}, s45, {F4}
    v_lshrrev_b32 v200, 3, v1
    v_lshlrev_b32 v200, 12, v200
    v_and_b32 v210, 7, v1
    v_lshl_add_u32 v200, v210, 4, v200
    s_lshl_b32 {lYG}, {sHG}, 18
    s_lshl_b32 s45, {sRB}, 7
    s_add_u32 {lYG}, {lYG}, s45
    s_lshl_b32 s45, {sHEAD}, 16
    s_add_u32 {lYG}, {lYG}, s45
    s_add_u32 {lYG}, {lYG}, {WS_Y}
    """)
def ydma():
    A(f"""
    s_add_u32 m0, {lWQL}, {L_Y}
    s_add_u32 s45, {lYG}, 32768
    buffer_load_dwordx4 v200, {srd(SWS)}, {lYG} offen sc1 lds
    s_add_u32 m0, {lWQL}, {L_Y + 1024}
    s_nop 0
    buffer_load_dwordx4 v200, {srd(SWS)}, s45 offen sc1 lds
    """)
y_setup()
A(f"""
; lanes 0..31: flags of producers 2lw, 2lw+1; lanes 32..63: this workgroup's own waves
v_and_b32 v11, 7, v1
v_lshlrev_b32 v11, 3, v11
v_lshrrev_b32 v10, 3, v1
v_and_b32 v10, 1, v10
s_lshl_b32 s45, {sHEAD}, 1
v_add_u32 v10, s45, v10
v_cmp_gt_u32 vcc, 32, v1
v_mov_b32 v67, {sHG}
s_nop 0
v_cndmask_b32 v10, v67, v10, vcc
v_lshl_add_u32 v10, v10, 7, v11
""")
if OPT.get("c1pre", 0): issue_chunk(1)
A("s_waitcnt lgkmcnt(0)\ns_barrier")
stamp("bk")
nxt_c = 2 if OPT.get("c1pre", 0) else 1
def upto(n):
    global nxt_c
    while nxt_c <= min(n, 7):
        if nxt_c == 7:
            A(f"buffer_load_dwordx2 v[68:69], v{VFL}, {srd(SWS)}, {lF3} offen sc1"); vq.append("f3")
        issue_chunk(nxt_c); nxt_c += 1
upto(2 - OPT["c2late"])
for c in range(8):
    vwait(f"c{c}")
    stamp(f"p{c}")
    A("s_barrier")
    stamp(f"b{c}")
    sl = SLOTS[c]; za, zo = (ZAD, sl) if sl < 49152 else (ZAD + 2, sl - 49152)
    for j in range(2):
        A(f"ds_read_b128 {vr(ZX+4*j,4)}, v{za+j} offset:{zo}\nds_read_b128 {vr(ZG+4*j,4)}, v{ZAD+4} offset:{128*c + 32*j}")
    if c == 3:
        A(f"ds_write_b16 v70, v71 offset:32")
    if c == 4: A(f"ds_read_b128 {vr(VAD,4)}, v{VDA}\nv_mov_b32 v64, {L_NL}\nds_read_b64 v[64:65], v64")
    if c == 5: A("v_readfirstlane_b32 s42, v64\nv_readfirstlane_b32 s43, v65")
    if c == OPT["hcp"]:
        for q in range(2): A(f"ds_read_b128 {vr(72+8*q,4)}, v62 offset:{1024*q}\nds_read_b32 v{76+8*q}, v62 offset:{1024*q+16}")
    upto(c + 3)
    if c == 6:
        vwait("f3")
        poll(lF3, 68, VFL, preloaded=True)
        stamp("f3seen")
        A(f"""
        s_add_u32 s45, {lYO}, {WS_UR}
        s_mov_b32 m0, {lURL}
        s_add_u32 {lYO}, {lYO}, {WS_Y}
        buffer_load_dwordx4 v{VL16}, {srd(SWS)}, s45 offen sc1 lds
        buffer_load_dwordx4 v{VL16}, {srd(SWS)}, s45 offen offset:1024 sc1 lds
        """)
        vq.extend(["ur"] * 2)
    if c == 6: issue_q(range(LQ))
    A("s_waitcnt lgkmcnt(0)")
    if c == OPT["hcp"]:
        for q in range(2):
            for i in range(4): A(f"v_alignbit_b32 v{88+4*q+i}, v{72+8*q+i+1}, v{72+8*q+i}, 16")
            A(f"ds_write_b128 v62, {vr(88+4*q,4)} offset:{1024*q + HSTR}")
    for j in range(2):
        A(f"{MF32} {vr(ZA,16)}, {vr(ZG+4*j,4)}, {vr(ZX+4*j,4)}, {'0' if c == 0 and j == 0 else vr(ZA,16)}")
if OPT.get("wo3", 0):
    A(f"""
    s_lshl_b32 s45, {sTB}, 2
    s_add_u32 s45, s45, {lLW}
    s_lshl_b32 s45, s45, 12
    s_add_u32 s45, s45, 384
    v_and_b32 v3, 3, v1
    v_lshlrev_b32 v3, 10, v3
    buffer_load_dword v3, v3, {srd(SWO)}, s45 offen
    """)
A(f"ds_write_b32 v{ZAD+5}, v{ZA}")
CA = [72, 136]; CG = [104, 168]; ACC = 24; DB = 56
def conv_reads(s):
    b = s & 1; out = []
    for i in range(8):
        out.append(f"ds_read_b128 {vr(CG[b]+4*i,4)}, v{VCG} offset:{512*(7-i) + 64*s}")
        o = (512 * (i & 1) + 64 * s) // 4
        out.append(f"ds_read2_b32 {vr(CA[b]+4*i,2)}, v{VCA + i//2} offset0:{o} offset1:{o+1}")
        out.append(f"ds_read2_b32 {vr(CA[b]+4*i+2,2)}, v{VCA + i//2} offset0:{o+2} offset1:{o+3}")
    return out
def conv_mfmas(s, order=None):
    b = s & 1; out = []; seen = set()
    pairs = sorted([(i, d) for i in range(8) for d in range(8) if i + d <= 7], key=order or (lambda p: (max(p), p[0] + p[1])))
    for i, d in pairs:
        j = i + d
        c = "0" if (s == 0 and j not in seen) else vr(ACC + 4*j, 4)
        seen.add(j)
        out.append((max(i, d), j, f"{MF16} {vr(ACC+4*j,4)}, {vr(CA[b]+4*i,4)}, {vr(CG[b]+4*d,4)}, {c}"))
    return out
if OPT["apre"]:
    for r in conv_reads(0):
        if "read2" in r: A(r)
A(f"s_waitcnt vmcnt({OPT.get('wo3', 0)}) lgkmcnt(0)")
stamp("pa")
A("s_barrier")
stamp("ba")
for r in conv_reads(0):
    if "read2" not in r or not OPT["apre"]: A(r)
cnt = 0
def conv_tick():
    global cnt
    for nm in ("w1at", "w2at", "bqat"):
        if cnt == OPT[nm]: A("s_barrier"); stamp({"w1at": "bw", "w2at": "bw2", "bqat": "bq"}[nm])
    if cnt == OPT["lf1p"]: f1_pre()
    cnt += 1
for s in range(3):
    nxt = conv_reads(s + 1)
    if s == 2: nxt = nxt + [f"ds_read_b128 {vr(DB+4*jj,4)}, v{VCD} offset:{512*(3-jj)}" for jj in range(4)]
    k = 0
    for n, (lvl, j, m) in enumerate(conv_mfmas(s)):
        if s == 0 and OPT["apre"] and n in (0, 1, 4, 9): A(f"s_waitcnt lgkmcnt({7 - lvl if lvl < 3 else 0})")
        if s == 0 and not OPT["apre"] and n == 0: A("s_waitcnt lgkmcnt(12)")
        if s == 0 and not OPT["apre"] and n == 16: A("s_waitcnt lgkmcnt(4)")
        conv_tick()
        A(m)
        if s == 0 and n < (9 if OPT["apre"] else 12): continue
        if k < len(nxt): A(nxt[k]); k += 1
    assert k == len(nxt)
    A("s_waitcnt lgkmcnt(0)")
    stamp(f"cs{s}")
LK = list(range(SPLIT - 1, -1, -1)); LPRE = OPT["lpre"]
LT = {k: [(KF[0], VF[0]), (KF[1], VF[1]), (72, 76), (84, 88), (96, 100)][i] for i, k in enumerate(LK)}
def l_f1(n):
    A(f"s_waitcnt vmcnt({n})\ns_cmp_eq_u32 {sRB}, 0\ns_cbranch_scc1 L_LF1OK")
    poll(sF1P, 4, VF1A, preloaded=True)
    A("L_LF1OK:")
    stamp("f1seen")
    if OPT["l3p"]: A("s_setprio 1")
LB = OPT.get("lburst", 0)
if LB:
    for k in LK[2:]:
        for l in ones(LT[k][1]): A(l)
if OPT["w2at"] == 108:
    if OPT["lf1p"] == 108: f1_pre()
    A("s_barrier"); stamp("bw2")
if LPRE: l_f1(0)
if LB:
    for k in LK[:LPRE]:
        for l in tile_loads(k, *LT[k]): A(l)
    stamp("lissued")
A(f"v_mov_b32 v16, 1\nv_mov_b32 v18, {L_GS}\ns_cmp_eq_u32 {lKH}, 0\ns_cbranch_scc0 L_KH1")
for kh in range(2):
    outg = range(4, 8) if kh == 0 else range(0, 4)
    keep = range(0, 4) if kh == 0 else range(4, 8)
    seq = [(j, m) for _, j, m in conv_mfmas(3, order=lambda p: (0 if (p[0] + p[1]) in outg else 1, p[0] + p[1]))]
    seq += [(j, f"{MF16} {vr(ACC+4*j,4)}, {vr(VAD,4)}, {vr(DB+4*(j%4),4)}, {vr(ACC+4*j,4)}") for j in keep]
    lastpos = {j: max(n for n, (jj, _) in enumerate(seq) if jj == j) for j in outg}
    lones = sum((ones(LT[k][1]) for k in LK[2:]), []) if not LB else []
    ll = sum((tile_loads(k, *LT[k]) for k in LK[:LPRE]), []) if not LB else []
    for n, (j, m) in enumerate(seq):
        A(m)
        if lones: A(lones.pop(0))
        if n + 108 == OPT["lf1p"] and not LPRE: f1_pre()
        if n + 108 == OPT["bqat"]: A("s_barrier"); stamp("bq")
        if ll and n % (36 // (2 * LPRE)) == 0:
            assert not lones or len(ll) > 2 * LPRE - 4
            A(ll.pop(0))
        for jo in outg:
            if n == lastpos[jo] + 8: A(f"ds_write_b128 v13, {vr(ACC+4*jo,4)} offset:{1024*(jo%4)}")
    assert all(lastpos[j] + 8 < len(seq) for j in outg) and not ll
    A("s_waitcnt lgkmcnt(0)\ns_mov_b64 exec, 15\nds_add_u32 v15, v16\ns_mov_b64 exec, -1")
    if OPT["lprio"]: A("s_setprio 1")
    stamp("convend")
    lds_wait(VT3, 17, 4)
    stamp("lsync")
    for jj in range(4): A(f"ds_read_b128 {vr(144+4*jj,4)}, v12 offset:{1024*jj}")
    kb = ACC + 4 * keep[0]
    for jj in range(4):
        A(f"s_waitcnt lgkmcnt({3-jj})")
        for i in range(0, 4, 2): A(f"v_pk_add_f32 {vr(kb+4*jj+i,2)}, {vr(kb+4*jj+i,2)}, {vr(144+4*jj+i,2)}")
        A(f"v_cvt_pk_bf16_f32 v{160+2*jj}, v{kb+4*jj}, v{kb+4*jj+1}\nv_cvt_pk_bf16_f32 v{161+2*jj}, v{kb+4*jj+2}, v{kb+4*jj+3}")
    if kh == 0: A("s_branch L_KHD\nL_KH1:")
A("L_KHD:")
for jj in range(4):
    A(f"buffer_store_dwordx2 {vr(160+2*jj,2)}, v{VYS}, {srd(SWS)}, {lYO} offen offset:{512*jj} sc1")
if not LPRE: l_f1(4)
for k in LK[LPRE:]:
    for l in tile_loads(k, *LT[k]): A(l)
stamp("ydone")
A(f"ds_read_b128 {vr(QF[0],4)}, v14\nds_read_b128 {vr(QF[1],4)}, v14 offset:4096\ns_waitcnt lgkmcnt(0)")
stamp("att0")
litems = [(k, qt, 1 if (k, qt) in ((1, 1), (0, 0)) else 0) for k in LK for qt in (0, 1) if (k, qt) != (0, 1)]
F4I = OPT["f4i"]
hooks = {}; lst = dict(wo=0, fl=0)
def l_m(i):
    def f():
        if i == F4I:
            A(f"s_waitcnt vmcnt({lst['wo'] + 3 * len(LK[LPRE:])})"); flag_store(sF4, 168); lst["fl"] = 1
        left = len(litems) - OPT["woe"] - i
        n = -(-(8 - lst["wo"]) // left) if left > 0 and i >= OPT["lw0"] else 0
        for _ in range(n): wo_dma(lst["wo"]); lst["wo"] += 1
        if i == OPT["yp"]: y_pre(); lst["fl"] += 1
    return f
lOK = "s91"
def y_pre(): A(f"buffer_load_dwordx2 v[8:9], v{VFL}, {srd(SWS)}, {lF4C} offen sc1")
def l_k(k):
    def f(): A(f"s_waitcnt vmcnt({3*k + (4 if LK.index(k) < LPRE else 0) + lst['wo'] + lst['fl']})")
    return f
for i in range(len(litems)): hooks[('m', i)] = l_m(i)
for k in LK: hooks[('k', k)] = l_k(k)
if OPT["lp0"] < len(litems): hooks[('i', OPT["lp0"])] = lambda: A("s_setprio 0")
A(f"s_cmp_ge_u32 {sK0}, {SPLIT}\ns_cbranch_scc1 L_LX_NONE")
lexits = []
def l_exit(i):
    lexits.append((i, lst["wo"]))
    return f"L_LXF{i}" if i <= F4I else f"L_LX{lst['wo']}"
att_run(litems, LT, hooks, l_exit)
assert lst["wo"] == 8 and F4I < len(litems)
A("L_LDONE:")
stamp("attend")
A(f"s_mov_b32 {sF4}, {lF4C}\ns_setprio 0\nv_mov_b32 v{VF1A}, v{VFL}")
assert len(litems) - OPT["woe"] <= OPT["yp"] < len(litems)
A("s_waitcnt vmcnt(1)")
exchange(1)

OO = O[0]
A("L_ATTFIN:\ns_or_b64 vcc, vcc, s[50:51]")
A("s_branch L_SLOW" if OPT["force_slow"] else "s_cbranch_vccnz L_SLOW")
A("L_ATTNORM:")
for i in range(0, 8, 2): A(f"v_pk_mul_f32 {vr(OO+i,2)}, {vr(OO+i,2)}, {vr(OO+10,2)} op_sel_hi:[1,0]")
for i in range(4): A(f"v_cvt_pk_bf16_f32 v{P+i}, v{OO+2*i}, v{OO+2*i+1}")
A(f"""
s_lshl_b32 s49, {sHG}, 4
s_add_u32 s49, s49, {sWAVE}
s_lshl_b32 s49, s49, 3
s_add_u32 s49, s49, {sF2}
""")
if OPT["local"]:
    A(f"""
    s_cmp_eq_u32 {sLOC}, 0
    s_cbranch_scc1 L_OGLOB
    buffer_store_dwordx4 {vr(P,4)}, v{VL16}, {srd(SWS)}, {sOOFF} offen nt
    s_branch L_OST
    L_OGLOB:
    """)
A(f"""
buffer_store_dwordx4 {vr(P,4)}, v{VL16}, {srd(SWS)}, {sOOFF} offen sc1
L_OST:
v_mov_b32 v16, s42
v_mov_b32 v17, s43
v_mov_b32 v18, 0
s_cmp_lt_u32 {sWAVE}, 4
s_cbranch_scc1 L_ONOY
s_waitcnt vmcnt(1)
v_cmp_ne_u64 vcc, {sNON}, v[8:9]
s_mov_b32 {lOK}, 0
s_cbranch_vccnz L_ONOY
s_mov_b32 {lOK}, 1
""")
ydma()
A("s_waitcnt vmcnt(2)\ns_branch L_OFL\nL_ONOY:\ns_waitcnt vmcnt(0)\nL_OFL:\ns_mov_b64 exec, 1")
if OPT["local"]:
    A(f"""
    s_cmp_eq_u32 {sLOC}, 0
    s_cbranch_scc1 L_OGLOB2
    buffer_store_dwordx2 v[16:17], v18, {srd(SWS)}, s49 offen
    s_branch L_ODONE
    L_OGLOB2:
    """)
A(f"buffer_store_dwordx2 v[16:17], v18, {srd(SWS)}, s49 offen sc1")
A("L_ODONE:\ns_mov_b64 exec, -1")
stamp("ost")
A(f"s_cmp_ge_u32 {sWAVE}, 4\ns_cbranch_scc1 L_FHELP")
mksrd(SOUT, P_OUT, 0x200000)
A(f"""
s_mov_b32 s48, {f32(-LOG2E)}
v_add_f32 v208, v208, v209
v_mul_f32 v208, s48, v208
v_exp_f32 v208, v208
""")
assert L_WO == 0
BT = 212
WO = lambda k: 72 + 4 * k
fin = ["v_add_f32 v208, 1.0, v208", "s_nop 0", "v_rcp_f32 v208, v208", "s_nop 0", "v_sub_f32 v26, 1.0, v208", "s_nop 0"]
for e in range(16):
    fin.append(f"v_lshlrev_b32 v{BT+e}, 16, v{XK+e//2}" if e % 2 == 0 else f"v_and_b32 v{BT+e}, 0xffff0000, v{XK+e//2}")
    fin.append(f"v_mul_f32 v{BT+e}, v{BT+e}, v26")
KQ = [[k for k in range(32) if (k >> 1) % 4 == q] for q in range(4)]
for k in sum(KQ, []):
    A(f"ds_read_b64_tr_b16 {vr(WO(k),2)}, v{FWO} offset:{k*2048}\nds_read_b64_tr_b16 {vr(WO(k)+2,2)}, v{FWO} offset:{k*2048+1024}")
    for _ in range(2):
        if fin: A(fin.pop(0))
assert not fin
OA = 228
OFS = [[28, 32, 36, 40, 44, 48, 52, 56], [60, 64, 68, 244, 248, 252, 4, 12]]
ymul = []
for e in range(16):
    ymul.append(f"v_lshlrev_b32 v27, 16, v{16+e//2}" if e % 2 == 0 else f"v_and_b32 v27, 0xffff0000, v{16+e//2}")
    ymul.append(f"v_mul_f32 v{BT+e}, v{BT+e}, v27")
def ordr(q): return [f"ds_read_b128 {vr(OFS[q&1][i],4)}, v{FO} offset:{8192*(k>>2) + 1024*(k&3)}" for i, k in enumerate(KQ[q])]
A("s_barrier")
stamp("bf")
for r in ordr(0): A(r)
LAGQ = 4
for q in range(4):
    nx = ordr(q + 1) if q < 3 else [f"ds_read_b64_tr_b16 {vr(16+2*j,2)}, v{FY} offset:{512*j}" for j in range(4)]
    for i, k in enumerate(KQ[q]):
        if i < 8 - LAGQ: A(f"s_waitcnt lgkmcnt({7 - i})")
        if i == 8 - LAGQ:
            A("s_waitcnt lgkmcnt(0)\ns_barrier")
            if q == 1: stamp("bf2")
        A(f"{MF32} {vr(OA,16)}, {vr(WO(k),4)}, {vr(OFS[q&1][i],4)}, {'0' if q == 0 and i == 0 else vr(OA,16)}")
        if i >= 8 - LAGQ:
            n = 3 if q < 3 else 4
            for r in nx[:n]: A(r)
            nx = nx[n:]
        if q == 3 and i == 6: A("s_waitcnt lgkmcnt(0)")
        if q == 3 and i >= 6:
            for _ in range(6): A(ymul.pop(0))
for l in ymul: A(l)
stamp("mmend")
for e in range(16): A(f"v_fmac_f32 v{BT+e}, v208, v{OA+e}")
for i in range(8): A(f"v_cvt_pk_bf16_f32 v{28+i}, v{BT+2*i}, v{BT+2*i+1}")
for i in range(4): A(f"v_permlane16_swap_b32 v{28+i}, v{32+i}")
OST = {0: "", 1: "sc1", 2: "nt", 3: "sc0 sc1", 4: "sc1 nt", 5: "sc0 sc1 nt"}[OPT.get("ost", 2)]
A(f"buffer_store_dwordx4 v[28:31], v{FST}, {srd(SOUT)}, {gOS0} offen {OST}\nbuffer_store_dwordx4 v[32:35], v{FST}, {srd(SOUT)}, {gOS1} offen {OST}")
A("s_branch L_FIN")
A(f"""
L_FHELP:
s_lshl_b32 s48, {sHEAD}, 14
s_lshl_b32 s49, {sRB}, 16
s_add_u32 s49, s49, s48
s_add_u32 s49, s49, {WS_UR}
""")
poll(sF2, 20, 10)
stamp("f2seen")
def odma(q):
    for qt in range(2):
        o = (q >> 1) * 8192 + qt * 4096 + (q & 1) * 2048
        A(f"s_add_u32 m0, s48, {L_O + o}\ns_add_u32 s45, s49, {o}")
        for i in range(2): A(f"buffer_load_dwordx4 v{VL16}, {srd(SWS)}, s45 offen offset:{1024*i} sc1 {'nt' if OPT.get('ont') else ''} lds")
OM = OPT["omode"]
if OM == 0:
    odma(0); odma(1); A("s_waitcnt vmcnt(4)\ns_barrier"); stamp("bf"); odma(2); odma(3); A("s_waitcnt vmcnt(8)\ns_barrier")
elif OM == 1:
    odma(0); odma(1); A("s_waitcnt vmcnt(4)\ns_barrier"); stamp("bf"); odma(2); A("s_waitcnt vmcnt(4)\ns_barrier"); odma(3)
elif OM == 2:
    odma(0); odma(1); odma(2); odma(3); A("s_waitcnt vmcnt(12)\ns_barrier"); stamp("bf"); A("s_waitcnt vmcnt(8)\ns_barrier")
else:
    odma(0); odma(1); odma(2); A("s_waitcnt vmcnt(8)\ns_barrier"); stamp("bf"); odma(3); A("s_waitcnt vmcnt(8)\ns_barrier")
A(f"""
s_cmp_eq_u32 {lOK}, 0
s_cbranch_scc1 L_YLATE
s_waitcnt vmcnt(4)
s_barrier
s_waitcnt vmcnt(0)
s_barrier
L_YJOIN:
s_waitcnt vmcnt(0)
s_barrier
L_FIN:
""")
if OPT.get("echo"):
    A("s_waitcnt vmcnt(0)")
    if not OPT["stamps"]: stamp("end")
    A("""
    s_memrealtime s[98:99]
    s_waitcnt lgkmcnt(0)
    s_add_u32 s97, s97, s98
    L_ECHO:
    s_memrealtime s[98:99]
    s_waitcnt lgkmcnt(0)
    s_sub_u32 s45, s98, s97
    s_cmp_lt_i32 s45, 0
    s_cbranch_scc1 L_ECHO
    """)
if OPT["stamps"]:
    A("s_waitcnt vmcnt(0)")
    stamp("end")
    A(f"""
    s_memrealtime s[98:99]
    s_waitcnt lgkmcnt(0)
    v_writelane_b32 v2, s98, 63
    v_writelane_b32 v2, s46, 62
    s_lshl_b32 s45, s2, 3
    s_add_u32 s45, s45, {sWAVE}
    s_lshl_b32 s45, s45, 8
    s_add_u32 s45, s45, {WS_ST}
    v_lshlrev_b32 v3, 2, v1
    buffer_store_dword v2, v3, {srd(SWS)}, s45 offen
    """)
A("L_END:\ns_endpgm")

A(f"L_YLATE:\nbuffer_load_dwordx2 v[52:53], v{VF1A}, {srd(SWS)}, {sF4} offen sc1\ns_waitcnt vmcnt(5)\ns_barrier\ns_waitcnt vmcnt(1)\ns_barrier\ns_waitcnt vmcnt(0)")
stamp("ylate")
poll(sF4, 52, VF1A, preloaded=True)
ydma()
A("s_branch L_YJOIN")
for g in range(8):
    A(f"L_GX{g}:"); wo_dma(g)
A("L_GX8:\ns_branch L_GDONE")
A("L_LX_NONE:")
for o in O:
    for i in range(9): A(f"v_mov_b32 v{o+i}, 0")
A("s_setprio 0\ns_waitcnt vmcnt(0)")
flag_store(sF4, 168)
for g in range(8):
    A(f"L_LX{g}:"); wo_dma(g)
A("L_LX8:")
y_pre()
A("s_branch L_LDONE")
for i, w in lexits:
    if i <= F4I:
        A(f"L_LXF{i}:\ns_waitcnt vmcnt(0)"); flag_store(sF4, 168); A(f"s_branch L_LX{w}")
MD, MF2 = 72, 88
A("L_SLOW:")
for l in build_mask(MD, False, 104, 105) + build_mask(MF2, True, 104, 105): A(l)
A(f"""
s_cmp_eq_u32 {sQT}, 0
s_cselect_b64 vcc, -1, 0
s_lshl_b32 s49, {sRB}, 1
s_add_u32 s49, s49, {sQT}
s_add_u32 s49, s49, 1
s_min_u32 s49, s49, 9
s_lshl_b32 s48, {sQT}, 13
s_add_u32 s48, s48, {sKVB}
v_mov_b32 v106, 0xff800000
""")
for i in range(4): A(f"v_cndmask_b32 v{QF[0]+i}, v{QF[1]+i}, v{QF[0]+i}, vcc")
def cmask(j): return vr(MD, 16) if j == 0 else (vr(MF2, 16) if j == 8 else "0")
def gK(j): A(f"s_sub_u32 s45, s48, {j*8192}\nbuffer_load_dwordx4 {vr(KF[0],4)}, v{VL16}, {srd(SWS)}, s45 offen sc1")
def gV(j): A(f"s_mov_b64 exec, {VMASK}\nbuffer_load_dwordx4 {vr(VF[0],4)}, v{VVA}, {srd(SWS)}, s45 offen sc1\nbuffer_load_dwordx4 {vr(VF[0]+4,4)}, v{VVA}, {srd(SWS)}, s45 offen offset:512 sc1\ns_mov_b64 exec, -1")
for j in range(9):
    gK(j)
    A("s_waitcnt vmcnt(0)")
    A(f"{MF32} {vr(S[0],16)}, {vr(KF[0],4)}, {vr(QF[0],4)}, {cmask(j)}")
    for i in range(0, 16, 2): A(f"v_max3_f32 v106, v{S[0]+i}, v{S[0]+i+1}, v106")
    if j < 8: A(f"s_cmp_eq_u32 s49, {j+1}\ns_cbranch_scc1 L_SLOW2")
A("L_SLOW2:\nv_mov_b32 v107, v106\nv_permlane32_swap_b32 v106, v107\nv_max_f32 v106, v106, v107")
for j in range(9):
    gK(j); gV(j)
    A("s_waitcnt vmcnt(0)")
    A(f"{MF32} {vr(S[0],16)}, {vr(KF[0],4)}, {vr(QF[0],4)}, {cmask(j)}")
    for i in range(16): A(f"v_sub_f32 v{S[0]+i}, v{S[0]+i}, v106")
    for i in range(16): A(f"v_exp_f32 v{S[0]+i}, v{S[0]+i}")
    for i in range(8): A(f"v_cvt_pk_bf16_f32 v{P+i}, v{S[0]+2*i}, v{S[0]+2*i+1}")
    A(f"{MF32} {vr(OO,16)}, {vr(VF[0],4)}, {vr(P,4)}, {'0' if j == 0 else vr(OO,16)}")
    A(f"{MF32} {vr(OO,16)}, {vr(VF[0]+4,4)}, {vr(P+4,4)}, {vr(OO,16)}")
    if j < 8: A(f"s_cmp_eq_u32 s49, {j+1}\ns_cbranch_scc1 L_SLOW3")
A(f"L_SLOW3:\ns_nop 11\nv_rcp_f32 v{OO+10}, v{OO+8}\ns_nop 0\ns_branch L_ATTNORM")

n = A.fix(verbose=bool(OPT.get("verbose", 0)))
label = NAME + "_kernel"
hdr = open("cdna_kernels/" + NAME + ".s.ref").read().split("; Override launch")[0]
out = hdr + f"""; @launch grid=(256,1,1) block=(512,1,1) lds=163840
; stamps: {" ".join(STN.keys())}
.amdgcn_target "amdgcn-amd-amdhsa--gfx950"
.text
.globl {label}
.p2align 8
.type {label},@function
{label}:
{A.text()}
.section .rodata,"a"
.p2align 6
.amdhsa_kernel {label}
  .amdhsa_next_free_vgpr 256
  .amdhsa_next_free_sgpr 102
  .amdhsa_accum_offset 256
  .amdhsa_group_segment_fixed_size 0
  .amdhsa_kernarg_size 104
  .amdhsa_user_sgpr_count 2
  .amdhsa_user_sgpr_kernarg_segment_ptr 1
  .amdhsa_system_sgpr_workgroup_id_x 1
.end_amdhsa_kernel
"""
open(sys.argv[1], "w").write(out)
print(f"wrote {sys.argv[1]}: {len(A.lines)} lines, {n} nops inserted")
```

```python
import sys, math, struct
sys.path.insert(0, "gen")
from asmx import Asm

NAME = "gated_mix__sliding_block__ssm_conv_h3__prompt"
OPT = dict(stamps=0, force_slow=0, spin=1 << 20, pf=1, f3c=1, local=1, split=4, f4i=2, cpf=1, span=20992,
           slp=0, lq=1, g1=3, lat=40, lf1p=100, lpre=4, nqc=3, hlate=1, yp=6, gall=0, apre=1, nq2=0, nq3=0, w1at=90, w2at=108, bqat=112, lburst=1, omode=2, l3p=0, lp0=4, lprio=1, woe=2, p3first=1, gw0=2, lw0=0, gri=1, c2late=0, hcp=2, f1p=15, yi=3)
for a in sys.argv[2:]:
    k, v = a.split("="); OPT[k] = v if k == "echo" else int(v, 0)

WS_KV, WS_O, WS_UR, WS_Y, WS_F, WS_ST, WS_SIZE = 0xC00000, 0x400000, 0x600000, 0x800000, 0xA00000, 0xB00000, 0x1000000
F3 = WS_F
F1 = WS_F + 0x2000
F4 = WS_F + 0x4000
F2 = WS_F + 0x8000
SLOTS = [0, 24576, 49152, 73728] * 2
L_H = 98304 + 64; HSTR = 4160
L_X = 115200
L_UR = 131584; URSTR = 4608
L_MISC = 140800
L_Z = L_MISC + 512
L_GW = L_MISC + 1024
L_KT = 146432; L_VT = L_KT + 9216
L_SCR = 147456
L_Y = 65536
L_MB = L_MISC + 2048
L_GS = L_MB + 3072
L_NL = L_MB + 3088
L_Q = 73728; L_OWN = L_Q + 8192
L_WO = 0; L_O = 98304
LOG2E = math.log2(math.e)
def f32(x): return "0x%08x" % struct.unpack("<I", struct.pack("<f", x))[0]

SX, SW, SWO, SK, SV, SH, SWS, SOUT = 4, 8, 12, 16, 20, 24, 28, 32
srd = lambda b: f"s[{b}:{b+3}]"
sWAVE, sRB, sHG, sCG, sTB, sLOC = "s36", "s37", "s38", "s39", "s40", "s41"
sNON = "s[42:43]"
sHEAD, sQT, sK0, sF1P, sOOFF, sF2, sF4, sWOG, sWOL, sROT, sKVB, sFH = "s53", "s54", "s55", "s56", "s57", "s58", "s59", "s62", "s63", "s90", "s94", "s95"
VMASK, ONES = "s[60:61]", "s[100:101]"
P_X, P_W, P_WO, P_K, P_V, P_SK, P_H, P_D, P_GW, P_OUT, P_DBG, P_WS = 64, 66, 68, 72, 74, 76, 78, 80, 82, 84, 86, 88
pp = lambda p: f"s[{p}:{p+1}]"

A = Asm()
STN = {}
for i, n in enumerate("start ptrs kvland bk predone p0 b0 p1 b1 p2 b2 p3 b3 p4 b4 p5 b5 f3seen p6 b6 p7 b7 kvend pa ba f1pub pw bw pw2 bw2 f1a qend f1b bq f1seen own cs0 cs1 cs2 lissued convend lsync ydone att0 attend bx ost f2seen bf bf2 ylate mmend end".split()):
    STN[n] = i
LITE = "start bk b0 b4 b7 kvend ba f1pub pw bw pw2 bw2 qend bq own cs0 cs1 cs2 lissued convend lsync ydone att0 attend bx ost f2seen bf bf2 mmend end f1seen".split()
TM = "s_memrealtime" if OPT.get("rt") else "s_memtime"
def stamp(name):
    if OPT.get("echo") == name:
        A("s_memrealtime s[98:99]\ns_waitcnt lgkmcnt(0)\ns_sub_u32 s97, s98, s96")
    if not OPT["stamps"]: return
    if OPT["stamps"] == 2 and (name in ("b1", "b2", "b3", "b5", "b6", "ptrs") or (name[0] == "p" and name[1].isdigit())): return
    if OPT["stamps"] == 3 and name not in LITE: return
    if name == "start":
        A(f"s_waitcnt lgkmcnt(0)\n{TM} s[98:99]\ns_mov_b32 s97, {STN[name]}")
    else:
        A(f"s_bfm_b64 exec, 1, s97\nv_mov_b32 v2, s98\ns_mov_b64 exec, -1\n{TM} s[98:99]\ns_mov_b32 s97, {STN[name]}")
    if name == "end": A(f"s_waitcnt lgkmcnt(0)\nv_writelane_b32 v2, s98, {STN[name]}")

def mksrd(b, p, size):
    A(f"s_mov_b32 s{b}, s{p}\ns_and_b32 s{b+1}, s{p+1}, 0xffff\ns_mov_b32 s{b+2}, {size}\ns_mov_b32 s{b+3}, 0x20000")
def vr(b, n): return f"v[{b}:{b+n-1}]"
def lines(t): return [l.strip() for l in t.split("\n") if l.strip()]
MF32 = "v_mfma_f32_32x32x16_bf16"; MF16 = "v_mfma_f32_16x16x32_bf16"

def take_nonce(vt):
    l = A.lab("NON"); d = A.lab("NOND")
    A(f"""
    s_mov_b32 s44, {OPT['spin']}
    {l}:
    v_readfirstlane_b32 s42, v{vt}
    v_readfirstlane_b32 s43, v{vt+1}
    s_cmp_lg_u32 s42, 0
    s_cbranch_scc1 {d}
    global_load_dwordx2 {vr(vt,2)}, v{vt+2}, {pp(P_DBG)} sc1
    s_waitcnt vmcnt(0)
    s_sub_u32 s44, s44, 1
    s_cbranch_scc0 {l}
    {d}:
    """)
def poll(soff, vt, vaddr, preloaded=False, hello=False):
    l = A.lab("POLL"); d = A.lab("POLLD"); c = A.lab("POLLC")
    A(f"s_mov_b32 s44, {OPT['spin']}")
    if preloaded: A(f"s_branch {c}")
    A(f"""
    {l}:
    buffer_load_dwordx2 {vr(vt,2)}, v{vaddr}, {srd(SWS)}, {soff} offen sc1
    s_waitcnt vmcnt(0)
    {c}:
    """)
    if hello:
        A(f"v_xor_b32 v{vt+1}, s43, v{vt+1}\nv_cmp_ne_u32 vcc, s42, v{vt}\nv_and_b32 v{vt}, 0x0fffffff, v{vt+1}\nv_cmp_ne_u32 s[50:51], 0, v{vt}\ns_or_b64 vcc, vcc, s[50:51]")
    else:
        A(f"v_cmp_ne_u64 vcc, {sNON}, {vr(vt,2)}")
    A(f"""
    s_sub_u32 s44, s44, 1
    s_cbranch_scc1 {d}
    s_cbranch_vccnz {l}
    {d}:
    """)
def flag_store(soff, vt, cache="sc1", hi="s43"):
    A(f"""
    v_mov_b32 v{vt}, s42
    v_mov_b32 v{vt+1}, {hi}
    v_mov_b32 v{vt+2}, 0
    s_mov_b64 exec, 1
    buffer_store_dwordx2 {vr(vt,2)}, v{vt+2}, {srd(SWS)}, {soff} offen {cache}
    s_mov_b64 exec, -1
    """)
def lds_wait(vaddr, vt, val):
    l = A.lab("LW"); d = A.lab("LWD")
    A(f"""
    s_mov_b32 s44, {OPT['spin']}
    s_branch {l}c
    {l}:
    s_sleep {OPT['slp']}
    {l}c:
    ds_read_b32 v{vt}, v{vaddr}
    s_waitcnt lgkmcnt(0)
    v_readfirstlane_b32 s45, v{vt}
    s_sub_u32 s44, s44, 1
    s_cbranch_scc1 {d}
    s_cmp_lt_u32 s45, {val}
    s_cbranch_scc1 {l}
    {d}:
    """)
def hello_check(vt):
    if not OPT["local"]: return
    poll(sFH, vt, vt + 2, preloaded=True, hello=True)
    A(f"""
    s_getreg_b32 s48, hwreg(HW_REG_XCC_ID, 0, 4)
    s_lshl_b32 s48, s48, 28
    v_cmp_ne_u32 vcc, s48, v{vt+1}
    s_cmp_eq_u64 vcc, 0
    s_cselect_b32 {sLOC}, {1 if OPT['local'] == 1 else 0}, 0
    """)
NLL = 1 if OPT["local"] else 0
def late_loads(vt):
    if not OPT["local"]: return
    A(f"""
    v_and_b32 v{vt+2}, 7, v1
    v_lshlrev_b32 v{vt+2}, 7, v{vt+2}
    buffer_load_dwordx2 {vr(vt,2)}, v{vt+2}, {srd(SWS)}, {sFH} offen sc1
    """)
def build_mask(base, far, vz, vinf):
    out = [f"v_mov_b32 v{vz}, 0", f"v_mov_b32 v{vinf}, 0xff800000"]
    for r in range(16):
        m = 8 * (r >> 2) + (r & 3)
        lo, hi = (0xFFFFFFFF << m) & 0xFFFFFFFF, (0xFFFFFFFF << (m + 4)) & 0xFFFFFFFF
        sp = 48 + 2 * (r & 1)
        out += [f"s_mov_b32 s{sp}, {hex(lo)}", f"s_mov_b32 s{sp+1}, {hex(hi)}"]
        out.append(f"v_cndmask_b32 v{base+r}, v{vz if far else vinf}, v{vinf if far else vz}, s[{sp}:{sp+1}]")
    return out

SPLIT = OPT["split"]
QF = [120, 124]; S = [16, 32]; P = 48; O = [56, 128]; VH = 144
VL16 = 211; MK = 212; VF = [228, 236]; KF = [244, 248]; VKA, VVA, VWOA, VT3 = 252, 253, 254, 255
VF1A = 7
def ones(base): return [f"v_mov_b64 {vr(base+i,2)}, {ONES}" for i in range(0, 8, 2)]
def att_setup(far, t0, t1):
    A(f"""
    s_and_b32 {sHEAD}, {sWAVE}, 3
    s_lshr_b32 {sQT}, {sWAVE}, 2
    s_mov_b32 s60, 0x0000ffff
    s_mov_b32 s61, 0x0000ffff
    s_mov_b32 s100, 0x3f803f80
    s_mov_b32 s101, 0x3f803f80
    v_and_b32 v{VVA}, 15, v1
    v_lshlrev_b32 v{VVA}, 4, v{VVA}
    v_lshrrev_b32 v{t0}, 5, v1
    v_lshl_add_u32 v{VVA}, v{t0}, 8, v{VVA}
    v_add_u32 v{VVA}, 1024, v{VVA}
    s_lshl_b32 s45, {sHEAD}, 12
    s_add_u32 s45, s45, {L_X}
    v_add_u32 v{VKA}, s45, v{VL16}
    v_lshrrev_b32 v{VWOA}, 3, v1
    v_lshlrev_b32 v{VWOA}, 10, v{VWOA}
    v_lshrrev_b32 v{t0}, 2, v1
    v_and_b32 v{VF1A}, 3, v{t0}
    v_and_b32 v{t0}, 4, v{t0}
    v_and_b32 v{t1}, 7, v1
    v_xor_b32 v{t0}, v{t0}, v{t1}
    v_lshl_add_u32 v{VWOA}, v{t0}, 4, v{VWOA}
    s_lshl_b32 s48, {sHEAD}, 11
    s_mul_i32 s45, {sHEAD}, 768
    s_add_u32 s45, s45, {L_MB}
    v_mov_b32 v{VT3}, s45
    s_max_u32 s45, {sRB}, 1
    s_sub_u32 s45, s45, 1
    v_min_u32 v{VF1A}, s45, v{VF1A}
    v_sub_u32 v{VF1A}, 3, v{VF1A}
    v_lshlrev_b32 v{VF1A}, 5, v{VF1A}
    v_and_b32 v{t1}, 3, v1
    v_lshl_add_u32 v{VF1A}, v{t1}, 3, v{VF1A}
    s_lshl_b32 s49, {sHG}, 5
    s_add_u32 s49, s49, {sRB}
    s_lshl_b32 s45, s49, 5
    s_add_u32 {sF1P}, s45, {F1 - 128}
    s_lshl_b32 {sKVB}, s49, 14
    s_add_u32 {sKVB}, {sKVB}, s48
    s_add_u32 {sKVB}, {sKVB}, {WS_KV}
    s_lshl_b32 s3, {sRB}, 14
    s_sub_u32 s3, {sKVB}, s3
    s_lshl_b32 {sK0}, {sRB}, 1
    s_sub_u32 {sK0}, 8, {sK0}
    s_max_i32 {sK0}, {sK0}, 0
    ; o goes into this workgroup's own (already consumed) rows of the ur array: [rb][hg][wave][1KB]
    s_lshl_b32 {sOOFF}, {sRB}, 3
    s_add_u32 {sOOFF}, {sOOFF}, {sHG}
    s_lshl_b32 {sOOFF}, {sOOFF}, 3
    s_add_u32 {sOOFF}, {sOOFF}, {sWAVE}
    s_lshl_b32 {sOOFF}, {sOOFF}, 10
    s_add_u32 {sOOFF}, {sOOFF}, {WS_UR}
    s_lshl_b32 {sF2}, {sRB}, 10
    s_add_u32 {sF2}, {sF2}, {F2}
    s_add_u32 {sFH}, {sF2}, 64
    s_lshl_b32 {sWOG}, {sWAVE}, 16
    s_lshl_b32 s45, {sHG}, 7
    s_add_u32 {sWOG}, {sWOG}, s45
    s_lshl_b32 {sWOL}, {sWAVE}, 13
    """)
    mksrd(SWO, P_WO, 0x80000)
    for l in build_mask(MK, far, t0, t1) + ones(VF[0]) + ones(VF[1]): A(l)
def tile_loads(kap, kreg, vreg):
    return [f"s_sub_u32 s45, {sKVB}, {(8-kap)*8192}\ns_max_u32 s45, s45, s3\nbuffer_load_dwordx4 {vr(kreg,4)}, v{VL16}, {srd(SWS)}, s45 offen sc1",
            f"s_sub_u32 s45, {sKVB}, {(8-kap)*8192}\ns_max_u32 s45, s45, s3\ns_mov_b64 exec, {VMASK}\nbuffer_load_dwordx4 {vr(vreg,4)}, v{VVA}, {srd(SWS)}, s45 offen sc1\n"
            f"buffer_load_dwordx4 {vr(vreg+4,4)}, v{VVA}, {srd(SWS)}, s45 offen offset:512 sc1\ns_mov_b64 exec, -1"]
def wo_dma(i):
    A(f"s_add_u32 m0, {sWOL}, {L_WO + 1024*i}\ns_add_u32 s45, {sWOG}, {8192*i}\nbuffer_load_dwordx4 v{VWOA}, {srd(SWO)}, s45 offen lds")
def f1_pre(): A(f"buffer_load_dwordx2 v[4:5], v{VF1A}, {srd(SWS)}, {sF1P} offen sc1")

def att_run(items, regs, hooks, exit_label):
    seen = set(); first_o = [True, True]
    def smm(i):
        k, qt, m = items[i]
        if k not in seen:
            seen.add(k)
            if ('k', k) in hooks: hooks[('k', k)]()
        A(f"{MF32} {vr(S[i&1],16)}, {vr(regs[k][0],4)}, {vr(QF[qt],4)}, {vr(MK,16) if m else '0'}")
    smm(0)
    for i, (k, qt, m) in enumerate(items):
        sb = S[i & 1]; vb = regs[k][1]
        late = i + 1 < len(items) and items[i + 1][0] not in seen and ('k', items[i + 1][0]) in hooks
        if i + 1 < len(items) and not late: smm(i + 1)
        if ('i', i) in hooks: hooks[('i', i)]()
        for e in range(8): A(f"v_exp_f32 v{sb+e}, v{sb+e}")
        for e in range(4): A(f"v_cvt_pk_bf16_f32 v{P+e}, v{sb+2*e}, v{sb+2*e+1}")
        for e in range(8, 10): A(f"v_exp_f32 v{sb+e}, v{sb+e}")
        c = '0' if first_o[qt] else vr(O[qt], 16); first_o[qt] = False
        A(f"{MF32} {vr(O[qt],16)}, {vr(vb,4)}, {vr(P,4)}, {c}")
        if ('m', i) in hooks: hooks[('m', i)]()
        for e in range(10, 12): A(f"v_exp_f32 v{sb+e}, v{sb+e}")
        if late: smm(i + 1)
        for e in range(12, 16): A(f"v_exp_f32 v{sb+e}, v{sb+e}")
        for e in range(4, 8): A(f"v_cvt_pk_bf16_f32 v{P+e}, v{sb+2*e}, v{sb+2*e+1}")
        lastofk = i + 1 == len(items) or items[i + 1][0] != k
        ex = lastofk and i + 1 < len(items) and k % 2 == 0
        if ex: A(f"s_cmp_eq_u32 {sK0}, {k}")
        A(f"{MF32} {vr(O[qt],16)}, {vr(vb+4,4)}, {vr(P+4,4)}, {vr(O[qt],16)}")
        if ex: A(f"s_cbranch_scc1 {exit_label(i + 1)}")
def exchange(qt):
    so, ro = (0, 2048) if qt == 0 else (2048, 0)
    A(f"""
    v_lshl_add_u32 v25, v1, 2, v{VT3}
    v_mov_b32 v27, {L_NL}
    ds_write_b128 v{VKA}, {vr(O[1-qt],4)} offset:{so}
    ds_write_b128 v{VKA}, {vr(O[1-qt]+4,4)} offset:{so+1024}
    ds_write_b32 v25, v{O[1-qt]+8} offset:{256 + 256*qt}
    s_waitcnt {'vmcnt(0) ' if qt == 0 else ''}lgkmcnt(0)
    s_barrier
    """)
    stamp("bx")
    A(f"""
    ds_read_b32 v26, v27 offset:8
    ds_read_b32 v24, v25 offset:{512 - 256*qt}
    ds_read_b128 v[16:19], v{VKA} offset:{ro}
    ds_read_b128 v[20:23], v{VKA} offset:{ro+1024}
    s_mov_b32 s45, {f32(2.0**-30)}
    s_mov_b32 s48, {f32(2.0**30)}
    s_waitcnt lgkmcnt(2)
    v_add_f32 v{O[0]+8}, v{O[qt]+8}, v24
    v_rcp_f32 v{O[0]+10}, v{O[0]+8}
    v_cmp_nlt_f32 vcc, s45, v{O[0]+8}
    v_cmp_ngt_f32 s[50:51], s48, v{O[0]+8}
    v_readfirstlane_b32 {sLOC}, v26
    s_waitcnt lgkmcnt(0)
    """)
    for i in range(0, 8, 2): A(f"v_pk_add_f32 {vr(O[0]+i,2)}, {vr(O[qt]+i,2)}, {vr(16+i,2)}")

A(f"""
s_cmp_ge_u32 s2, 256
s_cbranch_scc1 L_END
s_load_dwordx16 s[64:79], s[0:1], 0
s_load_dwordx8 s[80:87], s[0:1], 64
s_load_dwordx2 s[88:89], s[0:1], 96
s_memrealtime s[46:47]
v_lshrrev_b32 v3, 6, v0
v_and_b32 v1, 63, v0
v_readfirstlane_b32 {sWAVE}, v3
v_mov_b32 v2, 0
s_add_u32 {sCG}, s2, {OPT.get('cgs', 0)}
s_and_b32 {sCG}, {sCG}, 7
s_lshr_b32 {sTB}, s2, 3
s_lshl_b32 {sRB}, {sCG}, 2
s_lshr_b32 s44, s2, 6
s_add_u32 {sRB}, {sRB}, s44
s_and_b32 {sHG}, {sTB}, 7
s_add_u32 {sROT}, {sHG}, {sCG}
s_and_b32 {sROT}, {sROT}, 7
v_lshrrev_b32 v8, 3, v1
v_and_b32 v9, 7, v1
v_lshlrev_b32 v{VL16}, 4, v1
""")
if OPT["cpf"]:
    A(f"""
    s_getpc_b64 s[92:93]
    s_lshl_b32 s44, {sTB}, 3
    s_add_u32 s44, s44, {sWAVE}
    s_lshl_b32 s44, s44, 7
    s_min_u32 s44, s44, {OPT['span']}
    v_mov_b32 v3, s44
    global_load_dword v3, v3, s[92:93]
    """)
A(f"""
s_cmp_ge_u32 {sWAVE}, 4
s_cbranch_scc1 L_LOADER
""")
stamp("start")
gHP, gRT, gKVS, gWQG, gWQL, gUS, gF3, gF1, gXI, gOK = "s4", "s5", "s6", "s7", "s24", "s25", "s26", "s27", "s52", "s91"
VXA, VXB, VWA, VWB, VQA = 200, 204, 208, 209, 210
VWQ, VST, VNON, VPF = 244, 245, 246, 249
VUS, VTR, VSK = 136, 137, 138
A(f"""
v_lshlrev_b32 v10, 10, v8
v_lshl_add_u32 v10, v9, 4, v10
s_lshl_b32 s44, {sTB}, 16
s_lshl_b32 s45, {sCG}, 7
s_add_u32 s44, s44, s45
v_add_u32 v10, s44, v10
v_subrev_u32 v11, 8192, v10
v_and_b32 v14, 15, v1
s_lshl_b32 s44, {sCG}, 6
s_lshl_b32 s45, {sWAVE}, 4
s_add_u32 s50, s44, s45
v_add_u32 v15, s50, v9
v_lshlrev_b32 v12, 3, v15
s_lshl_b32 s45, {sWAVE}, 14
s_lshl_b32 {gWQL}, {sWAVE}, 11
s_add_u32 m0, {gWQL}, {L_KT + 1024}
s_add_u32 s49, s45, 8192
; lines of W with (addr>>7)&7 == 3: 28 workgroups x 4 waves x 14 lines
s_lshr_b32 s48, {sTB}, 3
s_sub_u32 s48, {sTB}, s48
s_cmp_gt_u32 {sHG}, 3
s_subb_u32 s48, s48, 0
s_lshl_b32 s48, s48, 2
s_add_u32 s48, s48, {sWAVE}
s_mul_i32 s48, s48, 14
v_add_u32 v19, s48, v1
v_min_u32 v19, 1535, v19
v_lshlrev_b32 v19, 10, v19
v_add_u32 v19, 384, v19
s_cmp_eq_u32 {sHG}, 3
s_cselect_b32 s50, 1, 0x3fff
s_mov_b32 s51, 0
s_waitcnt lgkmcnt(0)
""")
if OPT.get("echo"): A("s_mov_b32 s96, s46\ns_mov_b32 s97, 0")
stamp("ptrs")
if OPT["p3first"]: A(f"s_mov_b64 exec, s[50:51]\nglobal_load_dword v3, v19, {pp(P_W)}\ns_mov_b64 exec, -1")
mksrd(SK, P_K, 0x200000)
A(f"buffer_load_dwordx4 v10, {srd(SK)}, s45 offen lds\ns_add_u32 m0, {gWQL}, {L_KT + 2048}")
mksrd(SV, P_V, 0x200000)
A(f"""
buffer_load_dwordx4 v10, {srd(SK)}, s49 offen lds
s_add_u32 m0, {gWQL}, {L_VT}
s_nop 0
buffer_load_dwordx4 v10, {srd(SV)}, s45 offen lds
s_add_u32 m0, {gWQL}, {L_VT + 1024}
s_cmp_eq_u32 {sWAVE}, 2
buffer_load_dwordx4 v10, {srd(SV)}, s49 offen lds
s_cbranch_scc0 L_PFA
s_mov_b32 m0, {L_KT}
s_nop 0
buffer_load_dwordx4 v11, {srd(SK)}, 0 offen lds
L_PFA:
global_load_dwordx2 v[132:133], v12, {pp(P_SK)}
global_load_dwordx2 v[134:135], v12, {pp(P_SK)} offset:64
s_cmp_eq_u32 {sWAVE}, 0
s_cbranch_scc0 L_PFB
s_cmp_ge_u32 s2, 8
s_cbranch_scc1 L_PFB
s_or_b32 s46, s46, 1
v_mov_b32 v24, s46
v_mov_b32 v25, s47
v_mov_b32 v26, 0
v_mov_b32 v27, 0
s_mov_b64 exec, 1
global_atomic_cmpswap_x2 v26, v[24:27], {pp(P_DBG)} sc1
s_mov_b64 exec, -1
L_PFB:
s_cmp_eq_u32 {sWAVE}, 1
s_cbranch_scc0 L_PFC
s_lshl_b32 s45, {sROT}, 7
v_add_u32 v22, s45, v{VL16}
v_and_b32 v22, 1023, v22
s_mov_b32 m0, {L_GW}
s_nop 0
global_load_lds_dwordx4 v22, {pp(P_GW)}
L_PFC:
""")
HBLK = f"""
; h rows of this workgroup's two channels (aligned copy): wave w loads 2KB
s_lshl_b32 s44, {sCG}, 18
s_lshl_b32 s45, {sTB}, 13
s_add_u32 s44, s44, s45
s_add_u32 s44, s44, {gWQL}
v_add_u32 v22, s44, v{VL16}
s_lshr_b32 s45, {sWAVE}, 1
s_mul_i32 s45, s45, {2*HSTR - 4096}
s_add_u32 s45, s45, {gWQL}
s_add_u32 m0, s45, {L_H}
s_nop 0
global_load_lds_dwordx4 v22, {pp(P_H)}
global_load_lds_dwordx4 v22, {pp(P_H)} offset:1024
; wave 3: lines of W with (addr>>7)&7 == 3; wave 2: a share of W_q; wave 1: a share of wo and its slow lines
v_min_u32 v19, 47, v1
v_lshlrev_b32 v19, 10, v19
s_mul_i32 s48, {sTB}, {48*1024}
s_add_u32 s48, s48, 384
v_add_u32 v19, s48, v19
v_and_b32 v20, 1, v8
v_mul_u32_u24 v20, 3072, v20
v_lshl_add_u32 v20, v9, 7, v20
s_mul_i32 s48, s2, 6144
v_add_u32 v20, s48, v20
s_cmp_eq_u32 {sWAVE}, 2
s_cselect_b64 vcc, -1, 0
v_cndmask_b32 v19, v19, v20, vcc
s_lshl_b32 s48, s2, 11
v_lshl_add_u32 v20, v14, 7, s48
s_lshl_b32 s48, {sTB}, 14
s_add_u32 s48, s48, 384
v_lshl_add_u32 v21, v14, 10, s48
v_cmp_gt_u32 vcc, 32, v1
s_cmp_eq_u32 {sWAVE}, 1
s_cselect_b32 s48, s{P_WO}, s{P_W}
s_cselect_b32 s49, s{P_WO+1}, s{P_W+1}
v_cndmask_b32 v20, v20, v21, vcc
s_cselect_b64 vcc, -1, 0
v_cndmask_b32 v19, v19, v20, vcc
s_bitcmp1_b32 {OPT.get('pfm', 6 if OPT['p3first'] else 14)}, {sWAVE}
s_cselect_b64 exec, -1, 1
global_load_dword v{VPF}, v19, s[48:49]
s_mov_b64 exec, -1
"""
if not OPT["hlate"]: A(HBLK)
A(f"""
s_and_b32 {gHP}, {sWAVE}, 1
s_lshr_b32 {gRT}, {sWAVE}, 1
""")
mksrd(SWS, P_WS, WS_SIZE); mksrd(SW, P_W, 0x180000)
A(f"""
v_and_b32 v16, 31, v1
v_mov_b32 v{VNON+2}, 0
v_lshrrev_b32 v23, 5, v1             ; hh
v_lshrrev_b32 v34, 4, v16
v_mul_u32_u24 v34, 6144, v34
v_lshl_add_u32 v34, v14, 7, v34
s_mul_i32 s45, {gRT}, 12288
v_add_u32 v34, s45, v34
v_lshrrev_b32 v35, 1, v14
v_xor_b32 v35, v35, v23
""")
for s_ in range(4):
    A(f"v_xor_b32 v36, {2*s_}, v35\nv_lshl_add_u32 v{VXA+s_}, v36, 4, v34\nv_add_u32 v{VXB+s_}, 49152, v{VXA+s_}")
A(f"""
v_lshrrev_b32 v36, 2, v1
v_and_b32 v36, 3, v36                ; r
v_lshrrev_b32 v37, 1, v36
v_xor_b32 v37, {gHP}, v37
v_lshlrev_b32 v37, 6, v37
v_lshl_add_u32 v37, v36, 7, v37
v_lshrrev_b32 v28, 4, v1             ; g
v_and_b32 v29, 1, v28
v_lshl_add_u32 v37, v29, 5, v37
v_and_b32 v30, 3, v1                 ; c'
v_lshl_add_u32 v37, v30, 3, v37
v_lshl_add_u32 v{VQA}, v23, 10, v37
v_lshl_add_u32 v37, v23, 11, v37
v_add_u32 v{VWA}, 2048, v37
v_add_u32 v{VWB}, {2048 + 49152}, v37
v_lshl_add_u32 v37, v28, 3, v36
v_lshrrev_b32 v13, 1, v30
v_lshl_add_u32 v37, v13, 5, v37
v_lshlrev_b32 v37, 7, v37
v_and_b32 v13, 1, v1
v_lshl_add_u32 v37, v13, 3, v37
s_lshl_b32 s45, {sWAVE}, 5
s_add_u32 s45, s45, {L_KT}
v_add_u32 v{VTR}, s45, v37
v_lshlrev_b32 v12, 12, v15
v_and_b32 v13, 1, v8
v_lshl_add_u32 v13, v13, 2, v28      ; octet = g + 4*((l>>3)&1)
v_lshlrev_b32 v13, 4, v13
v_sub_u32 v12, v12, v13
v_add_u32 v{VUS}, 112, v12
s_lshl_b32 s45, {sTB}, 7
s_sub_u32 {gUS}, {WS_UR + 4080 - 112}, s45
v_lshlrev_b32 v31, 2, v29
v_xor_b32 v31, v9, v31
v_mul_u32_u24 v{VWQ}, 3072, v8
v_lshl_add_u32 v{VWQ}, v31, 4, v{VWQ}
""")
if OPT["hlate"]: A(HBLK)
att_setup(False, 38, 39)
A(f"""
v_lshl_add_u32 v{VST}, v29, 11, v{VVA}
s_lshl_b32 s49, {sHG}, 5
s_add_u32 s49, s49, {sRB}
s_lshl_b32 {gF1}, s49, 2
s_add_u32 {gF1}, {gF1}, {sWAVE}
s_lshl_b32 {gF1}, {gF1}, 3
s_add_u32 {gF1}, {gF1}, {F1}
s_lshl_b32 s45, {gRT}, 13
s_lshl_b32 s48, {gHP}, 12
s_add_u32 s45, s45, s48
s_lshl_b32 {gKVS}, s49, 14
s_add_u32 {gKVS}, {gKVS}, s45
s_add_u32 {gKVS}, {gKVS}, {WS_KV}
s_add_u32 s49, s45, {L_OWN}
v_add_u32 v4, s49, v{VL16}
v_add_u32 v5, s49, v{VST}
s_lshr_b32 s45, s45, 1
s_add_u32 s45, s45, {L_Q}
v_add_u32 v6, s45, v{VL16}
s_mul_i32 {gWQG}, {sWAVE}, 49152
s_lshl_b32 s45, {sHG}, 7
s_add_u32 {gWQG}, {gWQG}, s45
s_lshl_b32 {gF3}, {sCG}, 2
s_add_u32 {gF3}, {gF3}, {sWAVE}
s_lshl_b32 {gF3}, {gF3}, 5
s_add_u32 {gF3}, {gF3}, {sTB}
s_lshl_b32 {gF3}, {gF3}, 3
s_add_u32 {gF3}, {gF3}, {F3}
s_sub_u32 {gXI}, 8, {sCG}
s_and_b32 {gXI}, {gXI}, 7
s_lshl_b32 {gXI}, {gXI}, 4
s_lshl_b32 s45, {gHP}, 3
s_add_u32 {gXI}, {gXI}, s45
s_mov_b32 {sF4}, {sF1P}
s_lshl_b32 s45, {gRT}, 7
s_add_u32 s45, s45, {L_Z}
v_lshl_add_u32 v250, v16, 2, s45
""")
gOS0, gOS1 = "s70", "s71"
FWO, FY, FO, FST = 8, 9, 10, 11
FADDR = f"""
v_lshrrev_b32 v12, 5, v1
v_lshrrev_b32 v13, 2, v1
v_and_b32 v13, 3, v13
v_lshrrev_b32 v14, 1, v13
v_xor_b32 v14, {gHP}, v14
v_lshlrev_b32 v14, 6, v14
v_lshl_add_u32 v15, v12, 2, v13
v_lshl_add_u32 v14, v15, 7, v14
v_and_b32 v15, 1, v1
v_lshl_add_u32 v14, v15, 5, v14
v_lshrrev_b32 v15, 1, v1
v_and_b32 v15, 1, v15
v_lshl_add_u32 v14, v15, 3, v14
v_lshrrev_b32 v15, 4, v1
v_and_b32 v15, 1, v15
v_lshl_add_u32 v{FWO}, v15, 4, v14
v_lshl_add_u32 v14, v12, 4, v13
v_lshlrev_b32 v14, 7, v14
v_lshl_add_u32 v14, v15, 5, v14
v_and_b32 v13, 3, v1
v_lshl_add_u32 v14, v13, 3, v14
s_lshl_b32 s45, {gHP}, 12
s_lshl_b32 s48, {gRT}, 6
s_add_u32 s45, s45, s48
s_add_u32 s45, s45, {L_Y}
v_add_u32 v{FY}, s45, v14
s_lshl_b32 s45, {gRT}, 12
s_add_u32 s45, s45, {L_O}
v_add_u32 v{FO}, s45, v{VL16}
v_and_b32 v13, 15, v1
v_lshlrev_b32 v13, 10, v13
v_lshl_add_u32 v13, v12, 5, v13
v_lshl_add_u32 v{FST}, v15, 4, v13
s_lshl_b32 s45, {sRB}, 16
s_lshl_b32 s48, {gRT}, 15
s_add_u32 s45, s45, s48
s_lshl_b32 s48, {sHG}, 7
s_add_u32 s45, s45, s48
s_lshl_b32 s48, {gHP}, 6
s_add_u32 {gOS0}, s45, s48
s_add_u32 {gOS1}, {gOS0}, 16384
"""
A(FADDR)
A(f"""
s_lshl_b32 s45, {sHEAD}, 11
s_add_u32 s45, s45, {L_OWN}
v_add_u32 v12, s45, v{VL16}
v_add_u32 v13, s45, v{VVA}
s_lshl_b32 s45, {sHEAD}, 10
s_add_u32 s45, s45, {L_Q}
v_add_u32 v14, s45, v{VL16}
s_lshl_b32 s45, {sWAVE}, 11
s_add_u32 s45, s45, {L_X}
v_add_u32 v251, s45, v{VL16}
ds_write_b128 v251, v[8:11]
ds_write_b128 v251, v[12:15] offset:1024
""")
A("s_waitcnt vmcnt(3) lgkmcnt(0)")
stamp("kvland")
for i in range(4): A(f"v_alignbit_b32 v{VSK+i}, v{132+i}, v{132+i}, 16")
A("s_barrier")
stamp("bk")
XF = lambda kk: 72 + 4 * kk
for o in range(2):
    kb, vb = 144 + 10 * o, 150 + 10 * o
    for q in range(3): A(f"ds_read_b64_tr_b16 {vr(kb+2*q,2)}, v{VTR} offset:{o*16 + (4+4*q)*128}")
    for q in range(2): A(f"ds_read_b64_tr_b16 {vr(vb+2*q,2)}, v{VTR} offset:{9216 + o*16 + 4*q*128}")
for o in range(2):
    kb, vb = 144 + 10 * o, 150 + 10 * o
    K0, V0, U0 = 164, 176, 184
    A(f"s_waitcnt lgkmcnt({5 - 5*o})")
    for i in range(5): A(f"v_alignbit_b32 v{K0+i}, v{kb+i+1}, v{kb+i}, 16")
    src = lambda t, far: (kb + (t + 3) // 2 - far) if t % 2 else (K0 + t // 2 + 1 - far)
    for t in range(8): A(f"v_dot2_f32_bf16 v{U0+t}, v{src(t,0)}, v{VSK+2*o}, 0")
    for t in range(8): A(f"v_dot2_f32_bf16 v{U0+t}, v{src(t,1)}, v{VSK+2*o+1}, v{U0+t}")
    for e in range(8):
        A(f"v_lshlrev_b32 v{V0+e}, 16, v{vb+e//2}" if e % 2 == 0 else f"v_and_b32 v{V0+e}, 0xffff0000, v{vb+e//2}")
    for t in range(0, 8, 2): A(f"v_pk_mul_f32 {vr(U0+t,2)}, {vr(U0+t,2)}, {vr(V0+t,2)}")
    ob = 192 + 4 * o
    for d in range(4): A(f"v_cvt_pk_bf16_f32 v{ob+d}, v{U0+7-2*d}, v{U0+6-2*d}")
A(f"s_add_u32 s45, {gUS}, 32768")
for o in range(2):
    A(f"buffer_store_dwordx4 {vr(192+4*o,4)}, v{VUS}, {srd(SWS)}, {'s45' if o else gUS} offen sc1")
A(f"global_load_dwordx2 {vr(VNON,2)}, v{VNON+2}, {pp(P_DBG)} sc1")
A("s_waitcnt vmcnt(4)")
stamp("predone")

AK, AV = 8, 24
WF = lambda s_: 40 + 8 * s_
def gemm_reads(c, s_):
    sl = SLOTS[c]
    xa, wa, o = (VXA + s_, VWA, sl) if sl < 49152 else (VXB + s_, VWB, sl - 49152)
    r = [f"ds_read_b128 {vr(XF(4*c+s_),4)}, v{xa} offset:{o}"]
    for sec in range(2):
        for half in range(2):
            r.append(f"ds_read_b64_tr_b16 {vr(WF(s_)+4*sec+2*half,2)}, v{wa} offset:{o + s_*6144 + sec*1024 + half*512}")
    return r
def gemm_ms(c, s_):
    first = (c == 0 and s_ == 0)
    x = vr(XF(4*c+s_), 4)
    return [f"{MF32} {vr(AK,16)}, {vr(WF(s_),4)}, {x}, {'0' if first else vr(AK,16)}",
            f"{MF32} {vr(AV,16)}, {x}, {vr(WF(s_)+4,4)}, {'0' if first else vr(AV,16)}"]
for c in range(8):
    stamp(f"p{c}"); A("s_barrier"); stamp(f"b{c}")
    R = sum((gemm_reads(c, s_) for s_ in range(4)), [])
    km = [gemm_ms(c, s_) for s_ in range(4)]
    for r in R[:10]: A(r)
    A("s_waitcnt lgkmcnt(5)"); A(km[0][0])
    for r in R[10:13]: A(r)
    A(km[0][1])
    for r in R[13:16]: A(r)
    A("s_waitcnt lgkmcnt(6)"); A(km[1][0])
    for r in R[16:18]: A(r)
    A(km[1][1])
    for r in R[18:20]: A(r)
    A("s_waitcnt lgkmcnt(5)"); A(km[2][0])
    if c < 7:
        A(km[2][1])
        if c == OPT["f3c"]:
            A("s_waitcnt vmcnt(0)")
            take_nonce(VNON)
            flag_store(gF3, VNON)
            if OPT["local"]:
                A(f"""
                s_cmp_lg_u32 {sWAVE}, 3
                s_cbranch_scc1 L_NOHELLO
                s_getreg_b32 s48, hwreg(HW_REG_XCC_ID, 0, 4)
                s_lshl_b32 s48, s48, 28
                s_xor_b32 s48, s48, s43
                s_lshl_b32 s45, {sHG}, 7
                s_add_u32 s45, s45, {sFH}
                """)
                flag_store("s45", VNON, hi="s48")
                A(f"v_mov_b32 v3, {L_NL}\nv_mov_b32 v{VNON+1}, s43\nds_write_b64 v3, {vr(VNON,2)}")
                A("L_NOHELLO:")
        A("s_waitcnt lgkmcnt(0)"); A(km[3][0]); A(km[3][1])
        if c == OPT.get("hc", 4):
            A(f"s_cmp_lg_u32 {sWAVE}, 3\ns_cbranch_scc1 L_NOH2"); late_loads(VNON); A("L_NOH2:")
    else:
        A("s_waitcnt lgkmcnt(2)"); A(km[3][0]); A(km[2][1]); A("s_waitcnt lgkmcnt(0)"); A(km[3][1])
KP = 56
for i in range(8): A(f"v_cvt_pk_bf16_f32 v{KP+i}, v{AK+2*i}, v{AK+2*i+1}")
A(f"buffer_store_dwordx4 {vr(KP,4)}, v{VL16}, {srd(SWS)}, {gKVS} offen sc1")
A(f"buffer_store_dwordx4 {vr(KP+4,4)}, v{VL16}, {srd(SWS)}, {gKVS} offen offset:2048 sc1")
for i in range(8): A(f"v_cvt_pk_bf16_f32 v{KP+8+i}, v{AV+2*i}, v{AV+2*i+1}")
A(f"buffer_store_dwordx4 {vr(KP+8,4)}, v{VST}, {srd(SWS)}, {gKVS} offen sc1")
A(f"buffer_store_dwordx4 {vr(KP+12,4)}, v{VST}, {srd(SWS)}, {gKVS} offen offset:512 sc1")
stamp("kvend")
LQ = OPT["lq"]; G1 = OPT["g1"]; NA = LQ + G1
def g_wq(lc):
    A(f"""
    s_add_u32 s45, {sROT}, {lc}
    s_and_b32 s45, s45, 7
    s_mul_i32 s48, s45, 196608
    s_add_u32 s48, s48, {gWQG}
    s_add_u32 m0, {gWQL}, {lc*8192}
    s_add_u32 s50, s48, 24576
    buffer_load_dwordx4 v{VWQ}, {srd(SW)}, s48 offen lds
    s_add_u32 m0, {gWQL}, {lc*8192 + 1024}
    s_nop 0
    buffer_load_dwordx4 v{VWQ}, {srd(SW)}, s50 offen lds
    """)
XK = 200
A(f"ds_read_b128 v[8:11], v251\nds_read_b128 v[12:15], v251 offset:1024")
A(f"s_set_gpr_idx_on {gXI}, gpr_idx(SRC0)\ns_nop 1")
for i in range(8): A(f"v_mov_b32 v{XK+i}, v{XF(0)+i}")
A("s_set_gpr_idx_off")
stamp("pa")
A("s_barrier")
stamp("ba")
NB4 = 8 if OPT["gall"] else NA
for lc in range(LQ, NB4): g_wq(lc)
A(f"""
ds_read_b32 v208, v250
ds_read_b32 v209, v250 offset:256
ds_write_b128 v4, {vr(KP,4)}
ds_write_b128 v4, {vr(KP+4,4)} offset:2048
ds_write_b128 v5, {vr(KP+8,4)}
ds_write_b128 v5, {vr(KP+12,4)} offset:512
""")
for i in range(4): A(f"v_permlane32_swap_b32 v{XK+i}, v{XK+4+i}")
assert OPT["local"]
A(f"s_cmp_lg_u32 {sWAVE}, 3\ns_cbranch_scc1 L_NOH3\ns_waitcnt vmcnt({4 + 2*(NB4-LQ)})"); hello_check(VNON)
A(f"v_mov_b32 v{VNON}, {sLOC}\nds_write_b32 v3, v{VNON} offset:8\ns_waitcnt lgkmcnt(0)\nL_NOH3:")
A(f"s_waitcnt vmcnt({2*(NB4-LQ)})")
flag_store(gF1, VNON)
stamp("f1pub")
for lc in range(NB4, 8): g_wq(lc)
A(f"s_waitcnt vmcnt({1 + 2*(8-NA)}) lgkmcnt(0)")
stamp("pw")
A("s_barrier")
stamp("bw")
AQ = 16
QW = lambda i: [32, 36, 40, 44, 48, 52, 60, 64][i % 8]
LA = 6
GT = {k: (72 + 12 * i, 76 + 12 * i) if i < 4 else (148, 152) for i, k in enumerate(range(7, SPLIT - 1, -1))}
def qpart(k0, k1, hooks):
    def qread(kk):
        A(f"ds_read_b64_tr_b16 {vr(QW(kk),2)}, v{VQA} offset:{kk*2048}\nds_read_b64_tr_b16 {vr(QW(kk)+2,2)}, v{VQA} offset:{kk*2048+512}")
    for kk in range(k0, k0 + LA): qread(kk)
    if 'top' in hooks: hooks['top']()
    for kk in range(k0, k1):
        rem = min(LA - 1, k1 - 1 - kk)
        A(f"s_waitcnt lgkmcnt({2*rem})")
        A(f"{MF32} {vr(AQ,16)}, {vr(QW(kk),4)}, {vr(XF(kk),4)}, {'0' if kk == 0 else vr(AQ,16)}")
        if kk + LA < k1: qread(kk + LA)
        if kk in hooks: hooks[kk]()
gl = sum((tile_loads(k, kr, vv) for k, (kr, vv) in GT.items()), [])
def f1_look(name, again):
    l = A.lab("F1L")
    A(f"""
    s_waitcnt vmcnt(0)
    v_cmp_ne_u64 vcc, {sNON}, v[4:5]
    s_cmp_eq_u32 {sRB}, 0
    s_cselect_b64 vcc, 0, vcc
    s_mov_b32 {gOK}, 1
    s_cbranch_vccz {l}
    s_mov_b32 {gOK}, 0
    """)
    f1_pre()
    A(f"{l}:")
def cond(ls):
    def f():
        l = A.lab("CL")
        A(f"s_cmp_eq_u32 {gOK}, 0\ns_cbranch_scc1 {l}")
        for x in ls: A(x)
        A(f"{l}:")
    return f
F1A = OPT.get("f1a", 20)
def own_rd():
    for t in (1, 0):
        A(f"ds_read_b128 {vr(KF[t],4)}, v12 offset:{t*8192}\ns_mov_b64 exec, {VMASK}\nds_read_b128 {vr(VF[t],4)}, v13 offset:{t*8192}\nds_read_b128 {vr(VF[t]+4,4)}, v13 offset:{t*8192+512}\ns_mov_b64 exec, -1")
qpart(0, 4 * NA, {OPT["f1p"]: f1_pre})
own_rd()
for k, (kr, vv) in GT.items():
    if vv < 120:
        for l in ones(vv): A(l)
A("s_waitcnt vmcnt(1)")
stamp("pw2")
NQ2, NQ3 = OPT["nq2"], OPT["nq3"]; NQC = NQ2 + NQ3
if NQ2:
    f1_look("f1a", True); cond(gl[:NQ2])()
A("s_barrier")
stamp("bw2")
qpart(4 * NA, 32, {})
stamp("qend")
A(f"s_mov_b32 s48, {f32(0.25 * LOG2E)}\ns_mov_b32 s49, s48")
for i in range(0, 16, 2): A(f"v_pk_mul_f32 {vr(AQ+i,2)}, {vr(AQ+i,2)}, s[48:49]")
for i in range(4): A(f"v_cvt_pk_bf16_f32 v{32+i}, v{AQ+2*i}, v{AQ+2*i+1}")
A(f"ds_write_b128 v6, v[32:35]")
for i in range(4, 8): A(f"v_cvt_pk_bf16_f32 v{32+i}, v{AQ+2*i}, v{AQ+2*i+1}")
A(f"ds_write_b128 v6, v[36:39] offset:1024")
if len(gl) > 8:
    for l in ones(152): A(l)
if not NQ2: f1_look("f1a", True)
if NQ3: cond(gl[NQ2:NQC])()
A("s_waitcnt lgkmcnt(0)\ns_barrier")
stamp("bq")
A(f"ds_read_b128 {vr(QF[1],4)}, v14 offset:4096\nds_read_b128 {vr(QF[0],4)}, v14\ns_waitcnt lgkmcnt(0)")
gitems = [(9, 1, 1), (8, 0, 1), (8, 1, 0)] + [(k, qt, 0) for k in range(7, SPLIT - 1, -1) for qt in (0, 1)]
gst = dict(wo=0)
def g_k(k):
    def f():
        A(f"s_waitcnt vmcnt({3*(k - SPLIT) + gst['wo']})")
        if k == 7: stamp("own")
    return f
def g_m(i):
    def f():
        left = len(gitems) - OPT["woe"] - i
        n = -(-(8 - gst["wo"]) // left) if left > 0 else 0
        for _ in range(n): wo_dma(gst["wo"]); gst["wo"] += 1
    return f
def g_rest():
    A(f"s_cmp_lg_u32 {gOK}, 0\ns_cbranch_scc1 L_F1HAVE\ns_waitcnt vmcnt(0)")
    poll(sF1P, 4, VF1A, preloaded=True)
    stamp("f1seen")
    for l in gl[:NQC]: A(l)
    A("L_F1HAVE:")
hooks = {('k', k): g_k(k) for k in GT}
rest = gl[NQC:]
slots = [('i', 0), ('m', 0), ('i', 1), ('m', 1), ('i', 2)]
per = -(-len(rest) // len(slots))
def mk(n):
    def f():
        if n == 0: g_rest()
        for l in rest[n*per:(n+1)*per]: A(l)
    return f
for n, sl in enumerate(slots): hooks[sl] = mk(n)
for i in range(OPT["gw0"], len(gitems)): hooks[('m', i)] = g_m(i)
att_run(gitems, {9: (KF[1], VF[1]), 8: (KF[0], VF[0]), **GT}, hooks, lambda i: f"L_GX{gst['wo']}")
assert gst["wo"] == 8
A("L_GDONE:")
stamp("attend")
exchange(0)
A("s_branch L_ATTFIN")

lLW, lKH, lCH, lXB, lWB, lBLK, lWQL, lYO, lURL, lHL, lF3, lD = "s16", "s17", "s18", "s19", "s20", "s21", "s22", "s23", "s32", "s33", "s34", "s35"
A("L_LOADER:")
stamp("start")
A(f"""
s_sub_u32 {lLW}, {sWAVE}, 4
v_lshrrev_b32 v10, 4, v1
v_xor_b32 v11, v9, v10
v_lshlrev_b32 v12, 10, v8
v_lshl_add_u32 v4, v11, 4, v12       ; x voffset i=0
v_xor_b32 v5, 64, v4
v_and_b32 v10, 1, v10
v_lshlrev_b32 v10, 2, v10
v_xor_b32 v10, v9, v10
v_mul_u32_u24 v6, 3072, v8
v_lshl_add_u32 v6, v10, 4, v6        ; W voffset
s_lshl_b32 {lXB}, {sRB}, 16
s_lshl_b32 s45, {lLW}, 14
s_add_u32 {lXB}, {lXB}, s45
s_mul_i32 {lWB}, {lLW}, 49152
s_lshl_b32 s45, {sHG}, 7
s_add_u32 {lWB}, {lWB}, s45
s_add_u32 {lWB}, {lWB}, 1024
s_mul_i32 {lBLK}, {lLW}, 6144
s_lshl_b32 {lWQL}, {lLW}, 11
s_waitcnt lgkmcnt(0)
""")
if OPT.get("echo"): A("s_mov_b32 s96, s46\ns_mov_b32 s97, 0")
stamp("ptrs")
mksrd(SX, P_X, 0x200000); mksrd(SW, P_W, 0x180000)
vq = []
def issue_chunk(c):
    sl = SLOTS[c]
    A(f"""
    s_lshl_b32 s45, {sROT}, 7
    s_add_u32 s45, s45, {lXB}
    s_mul_i32 s48, {sROT}, 196608
    s_add_u32 s48, s48, {lWB}
    s_add_u32 m0, {lBLK}, {sl}
    s_add_u32 s49, s45, 8192
    buffer_load_dwordx4 v4, {srd(SX)}, s45 offen lds
    s_add_u32 m0, {lBLK}, {sl+1024}
    s_add_u32 s50, s48, 24576
    buffer_load_dwordx4 v5, {srd(SX)}, s49 offen lds
    s_add_u32 m0, {lBLK}, {sl+2048}
    s_add_u32 {sROT}, {sROT}, 1
    buffer_load_dwordx4 v6, {srd(SW)}, s48 offen lds
    buffer_load_dwordx4 v6, {srd(SW)}, s48 offen offset:1024 lds
    s_add_u32 m0, {lBLK}, {sl+4096}
    s_and_b32 {sROT}, {sROT}, 7
    buffer_load_dwordx4 v6, {srd(SW)}, s50 offen lds
    buffer_load_dwordx4 v6, {srd(SW)}, s50 offen offset:1024 lds
    """)
    vq.extend([f"c{c}"] * 6)
def issue_q(lcs):
    for lc in lcs:
        A(f"""
        s_mul_i32 s48, {sROT}, 196608
        s_add_u32 s48, s48, {lWB}
        s_sub_u32 s48, s48, 1024
        s_add_u32 m0, {lWQL}, {lc*8192}
        s_add_u32 s50, s48, 24576
        buffer_load_dwordx4 v6, {srd(SW)}, s48 offen lds
        s_add_u32 m0, {lWQL}, {lc*8192 + 1024}
        s_add_u32 {sROT}, {sROT}, 1
        buffer_load_dwordx4 v6, {srd(SW)}, s50 offen lds
        s_and_b32 {sROT}, {sROT}, 7
        """)
        vq.extend(["q"] * 2)
def vwait(*tags):
    last = max(i for i, t in enumerate(vq) if t in tags)
    A(f"s_waitcnt vmcnt({len(vq) - 1 - last})")
issue_chunk(0)
VCA, VCG, VCD, VDA, VAD, VYS, VFL = 16, 201, 202, 203, 204, 208, 209
ZA, ZX, ZG, ZAD = 24, 40, 48, 56
A(f"""
v_mov_b32 v66, 0
s_and_b32 {lKH}, {lLW}, 1
s_lshr_b32 s52, {lLW}, 1             ; ch
s_lshl_b32 s45, {sCG}, 6
s_lshl_b32 s48, {sTB}, 1
s_add_u32 {lCH}, s45, s48
s_add_u32 {lCH}, {lCH}, s52
s_lshl_b32 s45, {lCH}, 1
v_mov_b32 v71, s45
global_load_ushort v71, v71, {pp(P_D)}
s_lshl_b32 s45, {lCH}, 12
s_lshl_b32 s48, {lKH}, 11
s_add_u32 {lYO}, s45, s48
s_mul_i32 s45, s52, {2*HSTR}
s_add_u32 s45, s45, s48
s_add_u32 s45, s45, {L_H}
v_add_u32 v62, s45, v{VL16}
""")
vq.append("d")
mksrd(SWS, P_WS, WS_SIZE)
A(f"""
v_and_b32 v10, 15, v1
v_lshrrev_b32 v11, 4, v1
v_and_b32 v12, 1, v11
v_mul_u32_u24 v27, {HSTR}, v12
v_lshl_add_u32 v27, v10, 2, v27
s_mul_i32 {lHL}, {lLW}, {HSTR}
s_add_u32 {lHL}, {lHL}, {L_H}
s_sub_u32 s49, {lHL}, 64
v_add_u32 v27, s49, v27
ds_write_b32 v27, v66
s_mul_i32 {lURL}, s52, {URSTR}
s_lshl_b32 s48, {lKH}, 8
s_add_u32 s45, {lURL}, s48
s_add_u32 s45, s45, {L_UR + 4096}
v_lshl_add_u32 v31, v1, 2, s45
ds_write_b32 v31, v66
s_lshl_b32 s45, {lLW}, 7
s_add_u32 {lD}, s45, {L_MISC}
v_lshl_add_u32 v31, v10, 2, {lD}
ds_write_b32 v31, v66
v_add_u32 v31, 1, v10                ; beta
v_and_b32 v67, 1, v31
v_mul_u32_u24 v67, {HSTR}, v67
v_and_b32 v68, 30, v31
v_lshl_add_u32 v68, v11, 3, v68
v_lshl_add_u32 v67, v68, 1, v67
s_mul_i32 s44, s52, {2*HSTR}
s_add_u32 s44, s44, {L_H}
s_add_u32 s45, s44, s48
v_add_u32 v{VCA}, s45, v67
v_add_u32 v{VCA+1}, 1024, v{VCA}
v_add_u32 v{VCA+2}, 2048, v{VCA}
v_add_u32 v{VCA+3}, 3072, v{VCA}
v_lshlrev_b32 v67, 5, v10
v_lshlrev_b32 v69, 4, v11
v_sub_u32 v68, v69, v67
s_add_u32 s49, {lURL}, s48
s_add_u32 s49, s49, {L_UR + 512}
v_add_u32 v{VCG}, s49, v68
v_and_b32 v68, 16, v69
v_sub_u32 v68, v68, v67
s_lshl_b32 s48, {lKH}, 11
s_sub_u32 s45, {lURL}, s48
s_add_u32 s45, s45, {L_UR + 4064 - 1536}
v_add_u32 v{VCD}, s45, v68
s_add_u32 {lURL}, {lURL}, s48
s_add_u32 {lURL}, {lURL}, {L_UR}
v_lshl_add_u32 v68, v12, 3, v31
v_lshlrev_b32 v68, 1, v68
s_sub_u32 s44, s44, 32
v_mov_b32 v69, s44
v_mov_b32 v70, {lD}
v_cmp_gt_u32 vcc, 32, v1
v_lshl_add_u32 v{VYS}, v11, 3, v67
s_and_b32 s45, {lCH}, 63
v_cndmask_b32 v69, v70, v69, vcc
v_add_u32 v{VDA}, v69, v68
s_lshr_b32 s45, s45, 4
s_lshl_b32 s48, {sCG}, 2
s_add_u32 s45, s45, s48
s_lshl_b32 s45, s45, 8
s_add_u32 {lF3}, s45, {F3}
v_and_b32 v68, 31, v1
v_lshlrev_b32 v{VFL}, 3, v68
v_lshl_add_u32 v{ZAD+5}, v68, 2, {lD}
v_add_u32 v{ZAD+5}, {L_Z - L_MISC}, v{ZAD+5}
v_mul_u32_u24 v67, 6144, v12
v_lshl_add_u32 v67, v10, 7, v67
s_mul_i32 s45, {lKH}, 12288
v_add_u32 v67, s45, v67
v_lshrrev_b32 v69, 5, v1
v_lshrrev_b32 v68, 1, v10
v_xor_b32 v68, v68, v69
s_lshl_b32 s45, s52, 2
v_xor_b32 v68, s45, v68
v_lshl_add_u32 v{ZAD}, v68, 4, v67
v_xor_b32 v{ZAD+1}, 32, v{ZAD}
v_add_u32 v{ZAD+2}, 49152, v{ZAD}
v_add_u32 v{ZAD+3}, 49152, v{ZAD+1}
s_lshl_b32 s45, s52, 6
s_add_u32 s45, s45, {L_GW}
v_lshl_add_u32 v{ZAD+4}, v69, 4, s45
s_lshl_b32 s45, {lLW}, 12
s_add_u32 s45, s45, {L_SCR}
v_add_u32 v12, s45, v{VL16}
v_xor_b32 v13, 4096, v12
s_lshl_b32 s45, {lLW}, 10
s_add_u32 s45, s45, {L_Q}
v_add_u32 v14, s45, v{VL16}          ; Q address
v_min_u32 v15, 4, v1
v_mul_u32_u24 v15, 768, v15
v_add_u32 v15, {L_MB}, v15
ds_write_b32 v15, v66
s_lshl_b32 {sF4}, {sCG}, 5
s_add_u32 {sF4}, {sF4}, {sTB}
s_lshl_b32 {sF4}, {sF4}, 2
s_add_u32 {sF4}, {sF4}, {lLW}
s_lshl_b32 {sF4}, {sF4}, 3
s_add_u32 {sF4}, {sF4}, {F4}
""")
att_setup(True, 67, 68)
lF4C, lYG = "s24", "s25"
def y_setup():
    A(f"""
    s_lshl_b32 s45, {sHG}, 10
    s_lshl_b32 s48, {sHEAD}, 8
    s_add_u32 s45, s45, s48
    s_add_u32 {lF4C}, s45, {F4}
    v_lshrrev_b32 v200, 3, v1
    v_lshlrev_b32 v200, 12, v200
    v_and_b32 v210, 7, v1
    v_lshl_add_u32 v200, v210, 4, v200
    s_lshl_b32 {lYG}, {sHG}, 18
    s_lshl_b32 s45, {sRB}, 7
    s_add_u32 {lYG}, {lYG}, s45
    s_lshl_b32 s45, {sHEAD}, 16
    s_add_u32 {lYG}, {lYG}, s45
    s_add_u32 {lYG}, {lYG}, {WS_Y}
    """)
def ydma():
    A(f"""
    s_add_u32 m0, {lWQL}, {L_Y}
    s_add_u32 s45, {lYG}, 32768
    buffer_load_dwordx4 v200, {srd(SWS)}, {lYG} offen sc1 lds
    s_add_u32 m0, {lWQL}, {L_Y + 1024}
    s_nop 0
    buffer_load_dwordx4 v200, {srd(SWS)}, s45 offen sc1 lds
    """)
y_setup()
A(f"""
; lanes 0..31: flags of producers 2lw, 2lw+1; lanes 32..63: this workgroup's own waves
v_and_b32 v11, 7, v1
v_lshlrev_b32 v11, 3, v11
v_lshrrev_b32 v10, 3, v1
v_and_b32 v10, 1, v10
s_lshl_b32 s45, {sHEAD}, 1
v_add_u32 v10, s45, v10
v_cmp_gt_u32 vcc, 32, v1
v_mov_b32 v67, {sHG}
s_nop 0
v_cndmask_b32 v10, v67, v10, vcc
v_lshl_add_u32 v10, v10, 7, v11
""")
if OPT.get("c1pre", 0): issue_chunk(1)
A("s_waitcnt lgkmcnt(0)\ns_barrier")
stamp("bk")
nxt_c = 2 if OPT.get("c1pre", 0) else 1
def upto(n):
    global nxt_c
    while nxt_c <= min(n, 7):
        if nxt_c == 7:
            A(f"buffer_load_dwordx2 v[68:69], v{VFL}, {srd(SWS)}, {lF3} offen sc1"); vq.append("f3")
        issue_chunk(nxt_c); nxt_c += 1
upto(2 - OPT["c2late"])
for c in range(8):
    vwait(f"c{c}")
    stamp(f"p{c}")
    A("s_barrier")
    stamp(f"b{c}")
    sl = SLOTS[c]; za, zo = (ZAD, sl) if sl < 49152 else (ZAD + 2, sl - 49152)
    for j in range(2):
        A(f"ds_read_b128 {vr(ZX+4*j,4)}, v{za+j} offset:{zo}\nds_read_b128 {vr(ZG+4*j,4)}, v{ZAD+4} offset:{128*c + 32*j}")
    if c == 3:
        A(f"ds_write_b16 v70, v71 offset:32")
    if c == 4: A(f"ds_read_b128 {vr(VAD,4)}, v{VDA}\nv_mov_b32 v64, {L_NL}\nds_read_b64 v[64:65], v64")
    if c == 5: A("v_readfirstlane_b32 s42, v64\nv_readfirstlane_b32 s43, v65")
    if c == OPT["hcp"]:
        for q in range(2): A(f"ds_read_b128 {vr(72+8*q,4)}, v62 offset:{1024*q}\nds_read_b32 v{76+8*q}, v62 offset:{1024*q+16}")
    upto(c + 3)
    if c == 6:
        vwait("f3")
        poll(lF3, 68, VFL, preloaded=True)
        stamp("f3seen")
        A(f"""
        s_add_u32 s45, {lYO}, {WS_UR}
        s_mov_b32 m0, {lURL}
        s_add_u32 {lYO}, {lYO}, {WS_Y}
        buffer_load_dwordx4 v{VL16}, {srd(SWS)}, s45 offen sc1 lds
        buffer_load_dwordx4 v{VL16}, {srd(SWS)}, s45 offen offset:1024 sc1 lds
        """)
        vq.extend(["ur"] * 2)
    if c == 6: issue_q(range(LQ))
    A("s_waitcnt lgkmcnt(0)")
    if c == OPT["hcp"]:
        for q in range(2):
            for i in range(4): A(f"v_alignbit_b32 v{88+4*q+i}, v{72+8*q+i+1}, v{72+8*q+i}, 16")
            A(f"ds_write_b128 v62, {vr(88+4*q,4)} offset:{1024*q + HSTR}")
    for j in range(2):
        A(f"{MF32} {vr(ZA,16)}, {vr(ZG+4*j,4)}, {vr(ZX+4*j,4)}, {'0' if c == 0 and j == 0 else vr(ZA,16)}")
if OPT.get("wo3", 0):
    A(f"""
    s_lshl_b32 s45, {sTB}, 2
    s_add_u32 s45, s45, {lLW}
    s_lshl_b32 s45, s45, 12
    s_add_u32 s45, s45, 384
    v_and_b32 v3, 3, v1
    v_lshlrev_b32 v3, 10, v3
    buffer_load_dword v3, v3, {srd(SWO)}, s45 offen
    """)
A(f"ds_write_b32 v{ZAD+5}, v{ZA}")
CA = [72, 136]; CG = [104, 168]; ACC = 24; DB = 56
def conv_reads(s):
    b = s & 1; out = []
    for i in range(8):
        out.append(f"ds_read_b128 {vr(CG[b]+4*i,4)}, v{VCG} offset:{512*(7-i) + 64*s}")
        o = (512 * (i & 1) + 64 * s) // 4
        out.append(f"ds_read2_b32 {vr(CA[b]+4*i,2)}, v{VCA + i//2} offset0:{o} offset1:{o+1}")
        out.append(f"ds_read2_b32 {vr(CA[b]+4*i+2,2)}, v{VCA + i//2} offset0:{o+2} offset1:{o+3}")
    return out
def conv_mfmas(s, order=None):
    b = s & 1; out = []; seen = set()
    pairs = sorted([(i, d) for i in range(8) for d in range(8) if i + d <= 7], key=order or (lambda p: (max(p), p[0] + p[1])))
    for i, d in pairs:
        j = i + d
        c = "0" if (s == 0 and j not in seen) else vr(ACC + 4*j, 4)
        seen.add(j)
        out.append((max(i, d), j, f"{MF16} {vr(ACC+4*j,4)}, {vr(CA[b]+4*i,4)}, {vr(CG[b]+4*d,4)}, {c}"))
    return out
if OPT["apre"]:
    for r in conv_reads(0):
        if "read2" in r: A(r)
A(f"s_waitcnt vmcnt({OPT.get('wo3', 0)}) lgkmcnt(0)")
stamp("pa")
A("s_barrier")
stamp("ba")
for r in conv_reads(0):
    if "read2" not in r or not OPT["apre"]: A(r)
cnt = 0
def conv_tick():
    global cnt
    for nm in ("w1at", "w2at", "bqat"):
        if cnt == OPT[nm]: A("s_barrier"); stamp({"w1at": "bw", "w2at": "bw2", "bqat": "bq"}[nm])
    if cnt == OPT["lf1p"]: f1_pre()
    cnt += 1
for s in range(3):
    nxt = conv_reads(s + 1)
    if s == 2: nxt = nxt + [f"ds_read_b128 {vr(DB+4*jj,4)}, v{VCD} offset:{512*(3-jj)}" for jj in range(4)]
    k = 0
    for n, (lvl, j, m) in enumerate(conv_mfmas(s)):
        if s == 0 and OPT["apre"] and n in (0, 1, 4, 9): A(f"s_waitcnt lgkmcnt({7 - lvl if lvl < 3 else 0})")
        if s == 0 and not OPT["apre"] and n == 0: A("s_waitcnt lgkmcnt(12)")
        if s == 0 and not OPT["apre"] and n == 16: A("s_waitcnt lgkmcnt(4)")
        conv_tick()
        A(m)
        if s == 0 and n < (9 if OPT["apre"] else 12): continue
        if k < len(nxt): A(nxt[k]); k += 1
    assert k == len(nxt)
    A("s_waitcnt lgkmcnt(0)")
    stamp(f"cs{s}")
LK = list(range(SPLIT - 1, -1, -1)); LPRE = OPT["lpre"]
LT = {k: [(KF[0], VF[0]), (KF[1], VF[1]), (72, 76), (84, 88), (96, 100)][i] for i, k in enumerate(LK)}
def l_f1(n):
    A(f"s_waitcnt vmcnt({n})\ns_cmp_eq_u32 {sRB}, 0\ns_cbranch_scc1 L_LF1OK")
    poll(sF1P, 4, VF1A, preloaded=True)
    A("L_LF1OK:")
    stamp("f1seen")
    if OPT["l3p"]: A("s_setprio 1")
LB = OPT.get("lburst", 0)
if LB:
    for k in LK[2:]:
        for l in ones(LT[k][1]): A(l)
if OPT["w2at"] == 108:
    if OPT["lf1p"] == 108: f1_pre()
    A("s_barrier"); stamp("bw2")
if LPRE: l_f1(0)
if LB:
    for k in LK[:LPRE]:
        for l in tile_loads(k, *LT[k]): A(l)
    stamp("lissued")
A(f"v_mov_b32 v16, 1\nv_mov_b32 v18, {L_GS}\ns_cmp_eq_u32 {lKH}, 0\ns_cbranch_scc0 L_KH1")
for kh in range(2):
    outg = range(4, 8) if kh == 0 else range(0, 4)
    keep = range(0, 4) if kh == 0 else range(4, 8)
    seq = [(j, m) for _, j, m in conv_mfmas(3, order=lambda p: (0 if (p[0] + p[1]) in outg else 1, p[0] + p[1]))]
    seq += [(j, f"{MF16} {vr(ACC+4*j,4)}, {vr(VAD,4)}, {vr(DB+4*(j%4),4)}, {vr(ACC+4*j,4)}") for j in keep]
    lastpos = {j: max(n for n, (jj, _) in enumerate(seq) if jj == j) for j in outg}
    lones = sum((ones(LT[k][1]) for k in LK[2:]), []) if not LB else []
    ll = sum((tile_loads(k, *LT[k]) for k in LK[:LPRE]), []) if not LB else []
    for n, (j, m) in enumerate(seq):
        A(m)
        if lones: A(lones.pop(0))
        if n + 108 == OPT["lf1p"] and not LPRE: f1_pre()
        if n + 108 == OPT["bqat"]: A("s_barrier"); stamp("bq")
        if ll and n % (36 // (2 * LPRE)) == 0:
            assert not lones or len(ll) > 2 * LPRE - 4
            A(ll.pop(0))
        for jo in outg:
            if n == lastpos[jo] + 8: A(f"ds_write_b128 v13, {vr(ACC+4*jo,4)} offset:{1024*(jo%4)}")
    assert all(lastpos[j] + 8 < len(seq) for j in outg) and not ll
    A("s_waitcnt lgkmcnt(0)\ns_mov_b64 exec, 15\nds_add_u32 v15, v16\ns_mov_b64 exec, -1")
    if OPT["lprio"]: A("s_setprio 1")
    stamp("convend")
    lds_wait(VT3, 17, 4)
    stamp("lsync")
    for jj in range(4): A(f"ds_read_b128 {vr(144+4*jj,4)}, v12 offset:{1024*jj}")
    kb = ACC + 4 * keep[0]
    for jj in range(4):
        A(f"s_waitcnt lgkmcnt({3-jj})")
        for i in range(0, 4, 2): A(f"v_pk_add_f32 {vr(kb+4*jj+i,2)}, {vr(kb+4*jj+i,2)}, {vr(144+4*jj+i,2)}")
        A(f"v_cvt_pk_bf16_f32 v{160+2*jj}, v{kb+4*jj}, v{kb+4*jj+1}\nv_cvt_pk_bf16_f32 v{161+2*jj}, v{kb+4*jj+2}, v{kb+4*jj+3}")
    if kh == 0: A("s_branch L_KHD\nL_KH1:")
A("L_KHD:")
for jj in range(4):
    A(f"buffer_store_dwordx2 {vr(160+2*jj,2)}, v{VYS}, {srd(SWS)}, {lYO} offen offset:{512*jj} sc1")
if not LPRE: l_f1(4)
for k in LK[LPRE:]:
    for l in tile_loads(k, *LT[k]): A(l)
stamp("ydone")
A(f"ds_read_b128 {vr(QF[0],4)}, v14\nds_read_b128 {vr(QF[1],4)}, v14 offset:4096\ns_waitcnt lgkmcnt(0)")
stamp("att0")
litems = [(k, qt, 1 if (k, qt) in ((1, 1), (0, 0)) else 0) for k in LK for qt in (0, 1) if (k, qt) != (0, 1)]
F4I = OPT["f4i"]
hooks = {}; lst = dict(wo=0, fl=0)
def l_m(i):
    def f():
        if i == F4I:
            A(f"s_waitcnt vmcnt({lst['wo'] + 3 * len(LK[LPRE:])})"); flag_store(sF4, 168); lst["fl"] = 1
        left = len(litems) - OPT["woe"] - i
        n = -(-(8 - lst["wo"]) // left) if left > 0 and i >= OPT["lw0"] else 0
        for _ in range(n): wo_dma(lst["wo"]); lst["wo"] += 1
        if i == OPT["yp"]: y_pre(); lst["fl"] += 1
    return f
lOK = "s91"
def y_pre(): A(f"buffer_load_dwordx2 v[8:9], v{VFL}, {srd(SWS)}, {lF4C} offen sc1")
def l_k(k):
    def f(): A(f"s_waitcnt vmcnt({3*k + (4 if LK.index(k) < LPRE else 0) + lst['wo'] + lst['fl']})")
    return f
for i in range(len(litems)): hooks[('m', i)] = l_m(i)
for k in LK: hooks[('k', k)] = l_k(k)
if OPT["lp0"] < len(litems): hooks[('i', OPT["lp0"])] = lambda: A("s_setprio 0")
A(f"s_cmp_ge_u32 {sK0}, {SPLIT}\ns_cbranch_scc1 L_LX_NONE")
lexits = []
def l_exit(i):
    lexits.append((i, lst["wo"]))
    return f"L_LXF{i}" if i <= F4I else f"L_LX{lst['wo']}"
att_run(litems, LT, hooks, l_exit)
assert lst["wo"] == 8 and F4I < len(litems)
A("L_LDONE:")
stamp("attend")
A(f"s_mov_b32 {sF4}, {lF4C}\ns_setprio 0\nv_mov_b32 v{VF1A}, v{VFL}")
assert len(litems) - OPT["woe"] <= OPT["yp"] < len(litems)
A("s_waitcnt vmcnt(1)")
exchange(1)

OO = O[0]
A("L_ATTFIN:\ns_or_b64 vcc, vcc, s[50:51]")
A("s_branch L_SLOW" if OPT["force_slow"] else "s_cbranch_vccnz L_SLOW")
A("L_ATTNORM:")
for i in range(0, 8, 2): A(f"v_pk_mul_f32 {vr(OO+i,2)}, {vr(OO+i,2)}, {vr(OO+10,2)} op_sel_hi:[1,0]")
for i in range(4): A(f"v_cvt_pk_bf16_f32 v{P+i}, v{OO+2*i}, v{OO+2*i+1}")
A(f"""
s_lshl_b32 s49, {sHG}, 4
s_add_u32 s49, s49, {sWAVE}
s_lshl_b32 s49, s49, 3
s_add_u32 s49, s49, {sF2}
""")
if OPT["local"]:
    A(f"""
    s_cmp_eq_u32 {sLOC}, 0
    s_cbranch_scc1 L_OGLOB
    buffer_store_dwordx4 {vr(P,4)}, v{VL16}, {srd(SWS)}, {sOOFF} offen nt
    s_branch L_OST
    L_OGLOB:
    """)
A(f"""
buffer_store_dwordx4 {vr(P,4)}, v{VL16}, {srd(SWS)}, {sOOFF} offen sc1
L_OST:
v_mov_b32 v16, s42
v_mov_b32 v17, s43
v_mov_b32 v18, 0
s_cmp_lt_u32 {sWAVE}, 4
s_cbranch_scc1 L_ONOY
s_waitcnt vmcnt(1)
v_cmp_ne_u64 vcc, {sNON}, v[8:9]
s_mov_b32 {lOK}, 0
s_cbranch_vccnz L_ONOY
s_mov_b32 {lOK}, 1
""")
ydma()
A("s_waitcnt vmcnt(2)\ns_branch L_OFL\nL_ONOY:\ns_waitcnt vmcnt(0)\nL_OFL:\ns_mov_b64 exec, 1")
if OPT["local"]:
    A(f"""
    s_cmp_eq_u32 {sLOC}, 0
    s_cbranch_scc1 L_OGLOB2
    buffer_store_dwordx2 v[16:17], v18, {srd(SWS)}, s49 offen
    s_branch L_ODONE
    L_OGLOB2:
    """)
A(f"buffer_store_dwordx2 v[16:17], v18, {srd(SWS)}, s49 offen sc1")
A("L_ODONE:\ns_mov_b64 exec, -1")
stamp("ost")
A(f"s_cmp_ge_u32 {sWAVE}, 4\ns_cbranch_scc1 L_FHELP")
mksrd(SOUT, P_OUT, 0x200000)
A(f"""
s_mov_b32 s48, {f32(-LOG2E)}
v_add_f32 v208, v208, v209
v_mul_f32 v208, s48, v208
v_exp_f32 v208, v208
""")
assert L_WO == 0
BT = 212
WO = lambda k: 72 + 4 * k
fin = ["v_add_f32 v208, 1.0, v208", "s_nop 0", "v_rcp_f32 v208, v208", "s_nop 0", "v_sub_f32 v26, 1.0, v208", "s_nop 0"]
for e in range(16):
    fin.append(f"v_lshlrev_b32 v{BT+e}, 16, v{XK+e//2}" if e % 2 == 0 else f"v_and_b32 v{BT+e}, 0xffff0000, v{XK+e//2}")
    fin.append(f"v_mul_f32 v{BT+e}, v{BT+e}, v26")
KQ = [[k for k in range(32) if (k >> 1) % 4 == q] for q in range(4)]
for k in sum(KQ, []):
    A(f"ds_read_b64_tr_b16 {vr(WO(k),2)}, v{FWO} offset:{k*2048}\nds_read_b64_tr_b16 {vr(WO(k)+2,2)}, v{FWO} offset:{k*2048+1024}")
    for _ in range(2):
        if fin: A(fin.pop(0))
assert not fin
OA = 228
OFS = [[28, 32, 36, 40, 44, 48, 52, 56], [60, 64, 68, 244, 248, 252, 4, 12]]
ymul = []
for e in range(16):
    ymul.append(f"v_lshlrev_b32 v27, 16, v{16+e//2}" if e % 2 == 0 else f"v_and_b32 v27, 0xffff0000, v{16+e//2}")
    ymul.append(f"v_mul_f32 v{BT+e}, v{BT+e}, v27")
def ordr(q): return [f"ds_read_b128 {vr(OFS[q&1][i],4)}, v{FO} offset:{8192*(k>>2) + 1024*(k&3)}" for i, k in enumerate(KQ[q])]
A("s_barrier")
stamp("bf")
for r in ordr(0): A(r)
LAGQ = 4
for q in range(4):
    nx = ordr(q + 1) if q < 3 else [f"ds_read_b64_tr_b16 {vr(16+2*j,2)}, v{FY} offset:{512*j}" for j in range(4)]
    for i, k in enumerate(KQ[q]):
        if i < 8 - LAGQ: A(f"s_waitcnt lgkmcnt({7 - i})")
        if i == 8 - LAGQ:
            A("s_waitcnt lgkmcnt(0)\ns_barrier")
            if q == 1: stamp("bf2")
        A(f"{MF32} {vr(OA,16)}, {vr(WO(k),4)}, {vr(OFS[q&1][i],4)}, {'0' if q == 0 and i == 0 else vr(OA,16)}")
        if i >= 8 - LAGQ:
            n = 3 if q < 3 else 4
            for r in nx[:n]: A(r)
            nx = nx[n:]
        if q == 3 and i == 6: A("s_waitcnt lgkmcnt(0)")
        if q == 3 and i >= 6:
            for _ in range(6): A(ymul.pop(0))
for l in ymul: A(l)
stamp("mmend")
for e in range(16): A(f"v_fmac_f32 v{BT+e}, v208, v{OA+e}")
for i in range(8): A(f"v_cvt_pk_bf16_f32 v{28+i}, v{BT+2*i}, v{BT+2*i+1}")
for i in range(4): A(f"v_permlane16_swap_b32 v{28+i}, v{32+i}")
OST = {0: "", 1: "sc1", 2: "nt", 3: "sc0 sc1", 4: "sc1 nt", 5: "sc0 sc1 nt"}[OPT.get("ost", 2)]
A(f"buffer_store_dwordx4 v[28:31], v{FST}, {srd(SOUT)}, {gOS0} offen {OST}\nbuffer_store_dwordx4 v[32:35], v{FST}, {srd(SOUT)}, {gOS1} offen {OST}")
A("s_branch L_FIN")
A(f"""
L_FHELP:
s_lshl_b32 s48, {sHEAD}, 14
s_lshl_b32 s49, {sRB}, 16
s_add_u32 s49, s49, s48
s_add_u32 s49, s49, {WS_UR}
""")
poll(sF2, 20, 10)
stamp("f2seen")
def odma(q):
    for qt in range(2):
        o = (q >> 1) * 8192 + qt * 4096 + (q & 1) * 2048
        A(f"s_add_u32 m0, s48, {L_O + o}\ns_add_u32 s45, s49, {o}")
        for i in range(2): A(f"buffer_load_dwordx4 v{VL16}, {srd(SWS)}, s45 offen offset:{1024*i} sc1 {'nt' if OPT.get('ont') else ''} lds")
OM = OPT["omode"]
if OM == 0:
    odma(0); odma(1); A("s_waitcnt vmcnt(4)\ns_barrier"); stamp("bf"); odma(2); odma(3); A("s_waitcnt vmcnt(8)\ns_barrier")
elif OM == 1:
    odma(0); odma(1); A("s_waitcnt vmcnt(4)\ns_barrier"); stamp("bf"); odma(2); A("s_waitcnt vmcnt(4)\ns_barrier"); odma(3)
elif OM == 2:
    odma(0); odma(1); odma(2); odma(3); A("s_waitcnt vmcnt(12)\ns_barrier"); stamp("bf"); A("s_waitcnt vmcnt(8)\ns_barrier")
else:
    odma(0); odma(1); odma(2); A("s_waitcnt vmcnt(8)\ns_barrier"); stamp("bf"); odma(3); A("s_waitcnt vmcnt(8)\ns_barrier")
A(f"""
s_cmp_eq_u32 {lOK}, 0
s_cbranch_scc1 L_YLATE
s_waitcnt vmcnt(4)
s_barrier
s_waitcnt vmcnt(0)
s_barrier
L_YJOIN:
s_waitcnt vmcnt(0)
s_barrier
L_FIN:
""")
if OPT.get("echo"):
    A("s_waitcnt vmcnt(0)")
    if not OPT["stamps"]: stamp("end")
    if OPT["echo"] == "t0":
        A("s_sub_u32 s97, s96, s42\ns_max_i32 s97, s97, 0\ns_lshl_b32 s97, s97, 3")
    if OPT["echo"] == "absend":
        A("s_memrealtime s[98:99]\ns_waitcnt lgkmcnt(0)\ns_sub_u32 s97, s98, s42")
    if "ex" in OPT:
        A(f"s_and_b32 s45, s2, 7\ns_bitcmp1_b32 {OPT['ex']}, s45\ns_cselect_b32 s97, s97, 0")
    A("""
    s_memrealtime s[98:99]
    s_waitcnt lgkmcnt(0)
    s_add_u32 s97, s97, s98
    L_ECHO:
    s_memrealtime s[98:99]
    s_waitcnt lgkmcnt(0)
    s_sub_u32 s45, s98, s97
    s_cmp_lt_i32 s45, 0
    s_cbranch_scc1 L_ECHO
    """)
if OPT["stamps"]:
    A("s_waitcnt vmcnt(0)")
    stamp("end")
    A(f"""
    s_memrealtime s[98:99]
    s_waitcnt lgkmcnt(0)
    v_writelane_b32 v2, s98, 63
    v_writelane_b32 v2, s46, 62
    s_lshl_b32 s45, s2, 3
    s_add_u32 s45, s45, {sWAVE}
    s_lshl_b32 s45, s45, 8
    s_add_u32 s45, s45, {WS_ST}
    v_lshlrev_b32 v3, 2, v1
    buffer_store_dword v2, v3, {srd(SWS)}, s45 offen
    """)
A("L_END:\ns_endpgm")

A(f"L_YLATE:\nbuffer_load_dwordx2 v[52:53], v{VF1A}, {srd(SWS)}, {sF4} offen sc1\ns_waitcnt vmcnt(5)\ns_barrier\ns_waitcnt vmcnt(1)\ns_barrier\ns_waitcnt vmcnt(0)")
stamp("ylate")
poll(sF4, 52, VF1A, preloaded=True)
ydma()
A("s_branch L_YJOIN")
for g in range(8):
    A(f"L_GX{g}:"); wo_dma(g)
A("L_GX8:\ns_branch L_GDONE")
A("L_LX_NONE:")
for o in O:
    for i in range(9): A(f"v_mov_b32 v{o+i}, 0")
A("s_setprio 0\ns_waitcnt vmcnt(0)")
flag_store(sF4, 168)
for g in range(8):
    A(f"L_LX{g}:"); wo_dma(g)
A("L_LX8:")
y_pre()
A("s_branch L_LDONE")
for i, w in lexits:
    if i <= F4I:
        A(f"L_LXF{i}:\ns_waitcnt vmcnt(0)"); flag_store(sF4, 168); A(f"s_branch L_LX{w}")
MD, MF2 = 72, 88
A("L_SLOW:")
for l in build_mask(MD, False, 104, 105) + build_mask(MF2, True, 104, 105): A(l)
A(f"""
s_cmp_eq_u32 {sQT}, 0
s_cselect_b64 vcc, -1, 0
s_lshl_b32 s49, {sRB}, 1
s_add_u32 s49, s49, {sQT}
s_add_u32 s49, s49, 1
s_min_u32 s49, s49, 9
s_lshl_b32 s48, {sQT}, 13
s_add_u32 s48, s48, {sKVB}
v_mov_b32 v106, 0xff800000
""")
for i in range(4): A(f"v_cndmask_b32 v{QF[0]+i}, v{QF[1]+i}, v{QF[0]+i}, vcc")
def cmask(j): return vr(MD, 16) if j == 0 else (vr(MF2, 16) if j == 8 else "0")
def gK(j): A(f"s_sub_u32 s45, s48, {j*8192}\nbuffer_load_dwordx4 {vr(KF[0],4)}, v{VL16}, {srd(SWS)}, s45 offen sc1")
def gV(j): A(f"s_mov_b64 exec, {VMASK}\nbuffer_load_dwordx4 {vr(VF[0],4)}, v{VVA}, {srd(SWS)}, s45 offen sc1\nbuffer_load_dwordx4 {vr(VF[0]+4,4)}, v{VVA}, {srd(SWS)}, s45 offen offset:512 sc1\ns_mov_b64 exec, -1")
for j in range(9):
    gK(j)
    A("s_waitcnt vmcnt(0)")
    A(f"{MF32} {vr(S[0],16)}, {vr(KF[0],4)}, {vr(QF[0],4)}, {cmask(j)}")
    for i in range(0, 16, 2): A(f"v_max3_f32 v106, v{S[0]+i}, v{S[0]+i+1}, v106")
    if j < 8: A(f"s_cmp_eq_u32 s49, {j+1}\ns_cbranch_scc1 L_SLOW2")
A("L_SLOW2:\nv_mov_b32 v107, v106\nv_permlane32_swap_b32 v106, v107\nv_max_f32 v106, v106, v107")
for j in range(9):
    gK(j); gV(j)
    A("s_waitcnt vmcnt(0)")
    A(f"{MF32} {vr(S[0],16)}, {vr(KF[0],4)}, {vr(QF[0],4)}, {cmask(j)}")
    for i in range(16): A(f"v_sub_f32 v{S[0]+i}, v{S[0]+i}, v106")
    for i in range(16): A(f"v_exp_f32 v{S[0]+i}, v{S[0]+i}")
    for i in range(8): A(f"v_cvt_pk_bf16_f32 v{P+i}, v{S[0]+2*i}, v{S[0]+2*i+1}")
    A(f"{MF32} {vr(OO,16)}, {vr(VF[0],4)}, {vr(P,4)}, {'0' if j == 0 else vr(OO,16)}")
    A(f"{MF32} {vr(OO,16)}, {vr(VF[0]+4,4)}, {vr(P+4,4)}, {vr(OO,16)}")
    if j < 8: A(f"s_cmp_eq_u32 s49, {j+1}\ns_cbranch_scc1 L_SLOW3")
A(f"L_SLOW3:\ns_nop 11\nv_rcp_f32 v{OO+10}, v{OO+8}\ns_nop 0\ns_branch L_ATTNORM")

n = A.fix(verbose=bool(OPT.get("verbose", 0)))
label = NAME + "_kernel"
hdr = open("cdna_kernels/" + NAME + ".s.ref").read().split("; Override launch")[0]
out = hdr + f"""; @launch grid=(256,1,1) block=(512,1,1) lds=163840
; stamps: {" ".join(STN.keys())}
.amdgcn_target "amdgcn-amd-amdhsa--gfx950"
.text
.globl {label}
.p2align 8
.type {label},@function
{label}:
{A.text()}
.section .rodata,"a"
.p2align 6
.amdhsa_kernel {label}
  .amdhsa_next_free_vgpr 256
  .amdhsa_next_free_sgpr 102
  .amdhsa_accum_offset 256
  .amdhsa_group_segment_fixed_size 0
  .amdhsa_kernarg_size 104
  .amdhsa_user_sgpr_count 2
  .amdhsa_user_sgpr_kernarg_segment_ptr 1
  .amdhsa_system_sgpr_workgroup_id_x 1
.end_amdhsa_kernel
"""
open(sys.argv[1], "w").write(out)
print(f"wrote {sys.argv[1]}: {len(A.lines)} lines, {n} nops inserted")
```
